```python
import torch

def _softmax(x, axis=-1):
    return torch.softmax(x, dim=axis)
def _gelu(x):
    return torch.nn.functional.gelu(x, approximate="tanh")
def _silu(x):
    return torch.nn.functional.silu(x)
def _sigmoid(x):
    return torch.sigmoid(x)
def _layernorm(x, axis=-1, eps=1e-5):
    m = x.mean(dim=axis, keepdim=True)
    v = x.var(dim=axis, keepdim=True, unbiased=False)
    return (x - m) / torch.sqrt(v + eps)
def _scatter_add(tgt, idx, src, axis=0):
    return tgt.clone().index_add_(axis, idx, src)
def _segment_sum(src, seg, n):
    out = torch.zeros((n,) + src.shape[1:], dtype=src.dtype)
    return out.index_add_(0, seg, src)
def _pad(x, pw):
    flat = tuple(v for pair in reversed(pw) for v in pair)
    return torch.nn.functional.pad(x, flat)

kernel_name = 'parallel_sum__gqa_block_cached__glu_gated_glu__decode'

def setup_inputs():

    _w = (lambda a: (lambda t: t.to(torch.bfloat16) if t.is_floating_point() else t)(torch.as_tensor(a)))
    def _A_setup():
        B, Sq, D = 2, 1, 640
        Hq, Hkv, Sk, Dh = 32, 32, 8192, 192
        assert Hq % Hkv == 0, (Hq, Hkv)
        return {
            "x": _w((lambda *s: torch.randn(*s, dtype=torch.bfloat16) * 0.05)(B, Sq, D)),
            "k_cache": _w((lambda *s: torch.randn(*s, dtype=torch.bfloat16) * 3.2)(B, Hkv, Sk, Dh)),
            "v_cache": _w((lambda *s: torch.randn(*s, dtype=torch.bfloat16) * 1.6)(B, Hkv, Sk, Dh)),
            "wq": _w((lambda *s: torch.randn(*s, dtype=torch.bfloat16) * 3.2)(D, Hq * Dh) * (D ** -0.5)),
            "wo": _w((lambda *s: torch.randn(*s, dtype=torch.bfloat16) * 1.6)(Hq * Dh, D) * ((Hq * Dh) ** -0.5)),
        }
    _A_in = _A_setup()

    def _B_setup():
        B, S, D, F = 2, 1, 640, 1536
        return {
            "x": _w((lambda *s: torch.randn(*s, dtype=torch.bfloat16) * 0.05)(B, S, D)),
            "w_gate": _w((lambda *s: torch.randn(*s, dtype=torch.bfloat16) * 0.2)(D, F)),
            "w_up": _w((lambda *s: torch.randn(*s, dtype=torch.bfloat16) * 0.05)(D, F)),
            "w_down": _w((lambda *s: torch.randn(*s, dtype=torch.bfloat16) * 0.05)(F, D)),
        }
    _B_in = _B_setup()

    return {
        "A_x": _A_in["x"],
        "A_k_cache": _A_in["k_cache"],
        "A_v_cache": _A_in["v_cache"],
        "A_wq": _A_in["wq"],
        "A_wo": _A_in["wo"],
        "B_x": _B_in["x"],
        "B_w_gate": _B_in["w_gate"],
        "B_w_up": _B_in["w_up"],
        "B_w_down": _B_in["w_down"],
    }

def reference(A_x, A_k_cache, A_v_cache, A_wq, A_wo, B_x, B_w_gate, B_w_up, B_w_down):
    def _A_ref(x, k_cache, v_cache, wq, wo):
        B, Sq, D = x.shape
        Hq, Dh = 32, 192
        Hkv = k_cache.shape[1]
        rep = Hq // Hkv
        q = (lambda x, *d: x.permute(*d))((x @ wq).reshape(B, Sq, Hq, Dh), 0, 2, 1, 3)
        k = (lambda x, n, axis: torch.repeat_interleave(x, n, dim=axis))(k_cache, rep, axis=1)
        v = (lambda x, n, axis: torch.repeat_interleave(x, n, dim=axis))(v_cache, rep, axis=1)
        scores = torch.einsum("bhqd,bhkd->bhqk", q, k) * (Dh ** -0.5)
        p = _softmax(scores, axis=-1)
        o = torch.einsum("bhqk,bhkd->bhqd", p, v)
        return (lambda x, *d: x.permute(*d))(o, 0, 2, 1, 3).reshape(B, Sq, Hq * Dh) @ wo

    def _B_ref(x, w_gate, w_up, w_down):
        g = torch.einsum("bsd,df->bsf", x, w_gate)
        u = torch.einsum("bsd,df->bsf", x, w_up)
        h = _sigmoid(g) * u
        return torch.einsum("bsf,fd->bsd", h, w_down)

    x = A_x
    xn = _layernorm(x, axis=-1)
    return x + _A_ref(xn, A_k_cache, A_v_cache, A_wq, A_wo) + _B_ref(xn, B_w_gate, B_w_up, B_w_down)
```

```python
import sys, struct
NAME = "parallel_sum__gqa_block_cached__glu_gated_glu__decode"

def f2u(x):
    return struct.unpack("<I", struct.pack("<f", x))[0]

HEADER = """; Kernarg layout for this problem (96 bytes, ptrs only, base s[0:1]):
;   offset  32: d_in[4] A_wo  shape=(6144, 640) dtype=bfloat16
;   offset  88: d_ws      workspace
"""

class Gen:
    def __init__(self, **o):
        self.o = dict(stamp=False, kvflag=" nt", wflag="", order="wq_first")
        self.o.update(o)
        self.L = []
    def a(self, s):
        self.L.append("  " + s)
    def lab(self, s):
        self.L.append(s + ":")
    def c(self, s):
        self.L.append("  ; " + s)
    def nop(self, n):
        assert 1 <= n <= 16
        self.a(f"s_nop {n-1}")

S_X, S_K, S_V, S_WQ, S_WO, S_WG, S_WU, S_WD, S_OUT, S_DBG, S_WS = 16, 18, 20, 22, 24, 28, 30, 32, 34, 36, 38
R_KV, R_X, R_WQ, R_WO, R_WD, R_WS, R_DBG, R_OUT = 40, 44, 48, 52, 56, 60, 64, 68
S_SOFF = 72
S_WAVE, S_H, S_B, S_SPLIT, S_P, S_BP = 4, 5, 6, 7, 8, 9
S_T0, S_T1, S_T2, S_T3 = 10, 11, 12, 13
S_IT = 14
S_SPIN = 15
S_MEAN, S_MB, S_RSD = 80, 81, 82
S_C0, S_C1, S_C2, S_C3 = 83, 84, 85, 86
S_PAIR = 88
S_VALID = 90
S_ST = 92
S_MW = 87
V_LANE, V_KV = 0, 1
V_M = 2
V_T = 6
V_Q = 16
V_S = 28
V_A = 32
V_U = 36
V_RING = 40
V_W = 136
V_GLU = 112
V_XO = 132

RED_STRIDE = 1040
L_RED = 0
L_QP = 16640
L_YR = 17408
LDS_BYTES = L_YR + 8 * 2560

WS_ML = 0
WS_Y = 0x10000
WS_STAMP = 0x180000
WS_REC = 0x200000
OOB = 0x7fff0000
SENT = 0xffffffff
LOG2E = f2u(1.4426950408889634)
SCALE = f2u(192 ** -0.5)
DPPF = "row_mask:0xf bank_mask:0xf"

def srd(g, r, lo, hi, nrec):
    g.a(f"s_mov_b32 s{r}, s{lo}")
    g.a(f"s_mov_b32 s{r+1}, s{hi}")
    g.a(f"s_mov_b32 s{r+2}, {nrec}")
    g.a(f"s_mov_b32 s{r+3}, 0x20000")

def srd_off(g, r, base, soff, nrec):
    g.a(f"s_add_u32 s{r}, s{base}, s{soff}")
    g.a(f"s_addc_u32 s{r+1}, s{base+1}, 0")
    g.a(f"s_mov_b32 s{r+2}, {nrec}")
    g.a(f"s_mov_b32 s{r+3}, 0x20000")

def ring(r, t):
    return V_RING + (r * 3 + t) * 4

def ring_loads(g, r):
    for t in range(3):
        v = ring(r, t)
        g.a(f"buffer_load_dwordx4 v[{v}:{v+3}], v{V_KV}, s[{R_KV}:{R_KV+3}], s{S_SOFF+r} offen offset:{t*128}{g.o['kvflag']}")

def stamp(g, idx):
    if not g.o["stamp"]:
        return
    g.a(f"s_memrealtime s[{S_ST}:{S_ST+1}]")
    g.a("s_waitcnt lgkmcnt(0)")
    g.a(f"v_writelane_b32 v{V_STAMPV}, s{S_ST}, {idx}")

V_STAMPV = 15

def reduce_row16(g, op, regs):
    steps = ["quad_perm:[1,0,3,2]", "quad_perm:[2,3,0,1]", "row_half_mirror", "row_mirror"]
    for st in steps:
        for r in regs:
            g.a(f"{op}_dpp v{r}, v{r}, v{r} {st} {DPPF}")
        if len(regs) < 3:
            g.nop(3 - len(regs))

def reduce_rows(g, op, r, tmp, do32=True):
    g.a(f"v_mov_b32 v{tmp}, v{r}")
    g.nop(2)
    g.a(f"v_permlane16_swap_b32 v{r}, v{tmp}")
    g.nop(2)
    g.a(f"{op} v{r}, v{r}, v{tmp}")
    if do32:
        g.a(f"v_mov_b32 v{tmp}, v{r}")
        g.nop(2)
        g.a(f"v_permlane32_swap_b32 v{r}, v{tmp}")
        g.nop(2)
        g.a(f"{op} v{r}, v{r}, v{tmp}")

def bf16r(g, d, s):
    g.a(f"v_cvt_pk_bf16_f32 v{d}, v{s}, v{s}")
    g.a(f"v_and_b32 v{d}, 0xffff0000, v{d}")

def k_group(g, r, wait, extra=None):
    t = V_T + (r & 1)
    g.a(f"v_mov_b32 v{t}, 0")
    g.a(f"s_waitcnt vmcnt({wait})")
    for tt in range(3):
        for k in range(4):
            g.a(f"v_dot2c_f32_bf16 v{t}, v{ring(r,tt)+k}, v{V_Q+tt*4+k}")
    ring_loads(g, r)
    if extra: extra()
    g.a(f"v_add_f32_dpp v{t}, v{t}, v{t} quad_perm:[1,0,3,2] {DPPF}")
    g.nop(2)
    g.a(f"v_add_f32_dpp v{t}, v{t}, v{t} quad_perm:[2,3,0,1] {DPPF}")
    g.nop(2)
    g.a(f"v_add_f32_dpp v{t}, v{t}, v{t} row_half_mirror {DPPF}")
    g.a(f"v_cndmask_b32 v{V_S}, v{V_S}, v{t}, vcc")
    g.a("s_lshl_b64 vcc, vcc, 1")

def k_iter_head(g):
    g.a(f"v_mov_b32 v{V_S+3}, v{V_S+2}")
    g.a(f"v_mov_b32 v{V_S+2}, v{V_S+1}")
    g.a(f"v_mov_b32 v{V_S+1}, v{V_S}")
    g.a("s_mov_b32 vcc_lo, 0x01010101")
    g.a("s_mov_b32 vcc_hi, 0x01010101")

def v_group(g, r, wait, loads=True):
    P = V_S + 3
    a = r & 3
    qp = f"quad_perm:[{a},{a},{a},{a}]"
    t = V_T
    g.a(f"v_mov_b32_dpp v{t}, v{P} {qp} {DPPF}")
    near, far = ((0, 1), (2, 3)) if r < 4 else ((2, 3), (0, 1))
    for k in near:
        g.a(f"v_and_b32_dpp v{V_A+k}, v{P}, v{V_M+k} {qp} {DPPF}")
    for k in far:
        g.a(f"v_and_b32_dpp v{V_A+k}, v{t}, v{V_M+k} row_half_mirror {DPPF}")
    g.a(f"s_waitcnt vmcnt({wait})")
    g.nop(1)
    for tt in range(3):
        acc = V_Q + tt * 4
        b = ring(r, tt)
        g.a(f"v_mfma_f32_16x16x32_bf16 v[{acc}:{acc+3}], v[{V_A}:{V_A+3}], v[{b}:{b+3}], v[{acc}:{acc+3}]")
    if loads:
        ring_loads(g, r)

V_ML = 36
V_F = 38
V_MLA = 39
V_CNT = 14

def ml_eval(g):
    m, l = V_ML, V_ML + 1
    t0, t1, t2 = V_T + 2, V_T + 3, V_T + 4
    g.a(f"v_max_u32 v{t0}, v{m}, v{l}")
    g.a(f"v_cmp_eq_u32 s[{S_VALID}:{S_VALID+1}], -1, v{t0}")
    g.a(f"v_mov_b32 v{t0}, v{m}")
    g.nop(2)
    reduce_row16(g, "v_max_f32", [t0])
    reduce_rows(g, "v_max_f32", t0, t1, do32=False)
    g.a(f"v_sub_f32 v{t1}, v{m}, v{t0}")
    g.a(f"v_mul_f32 v{t1}, s{S_C0}, v{t1}")
    g.a(f"v_exp_f32 v{t1}, v{t1}")
    g.a(f"v_sub_f32 v{t0}, s{S_MW}, v{t0}")
    g.a(f"v_mul_f32 v{t1}, v{t1}, v{l}")
    g.a(f"v_mul_f32 v{t0}, s{S_C0}, v{t0}")
    g.a(f"v_exp_f32 v{t0}, v{t0}")
    reduce_row16(g, "v_add_f32", [t1])
    reduce_rows(g, "v_add_f32", t1, t2, do32=False)
    g.a(f"v_rcp_f32 v{t1}, v{t1}")
    g.nop(1)
    g.a(f"v_mul_f32 v{V_F}, v{t0}, v{t1}")

def ml_load(g):
    g.a(f"buffer_load_dwordx2 v[{V_ML}:{V_ML+1}], v{V_MLA}, s[{R_WS}:{R_WS+3}], 0 offen sc1")

SPIN_MAX = 200000

def build(**opts):
    g = Gen(**opts)
    a = g.a
    wf = g.o["wflag"]
    g.L.append(HEADER + f"; @launch grid=(256,1,1) block=(512,1,1) lds={LDS_BYTES}")
    g.L.append('.amdgcn_target "amdgcn-amd-amdhsa--gfx950"')
    g.L.append(".text")
    g.L.append(f".globl {NAME}_kernel")
    g.L.append(".p2align 8")
    g.L.append(f".type {NAME}_kernel,@function")
    g.lab(f"{NAME}_kernel")
    a("s_cmp_ge_u32 s2, 256")
    a("s_cbranch_scc1 L_end")
    a("s_load_dwordx16 s[16:31], s[0:1], 0")
    a("s_load_dwordx8 s[32:39], s[0:1], 64")
    if g.o["stamp"]:
        a(f"v_mov_b32 v{V_STAMPV}, 0")
    g.c("wave id, lane id, workgroup decode")
    T = [V_T + i for i in range(9)]
    a(f"v_lshrrev_b32 v{T[0]}, 6, v0")
    a(f"v_mov_b32 v{T[8]}, v0")
    a(f"v_readfirstlane_b32 s{S_WAVE}, v{T[0]}")
    a(f"v_and_b32 v{V_LANE}, 63, v0")
    a(f"s_and_b32 s{S_T0}, s2, 7")
    a(f"s_lshr_b32 s{S_T1}, s2, 3")
    a(f"s_lshr_b32 s{S_T2}, s{S_T1}, 3")
    a(f"s_lshl_b32 s{S_H}, s{S_T0}, 2")
    a(f"s_add_u32 s{S_H}, s{S_H}, s{S_T2}")
    a(f"s_bfe_u32 s{S_B}, s{S_T1}, 0x10002")
    a(f"s_and_b32 s{S_SPLIT}, s{S_T1}, 3")
    a(f"s_lshl_b32 s{S_P}, s{S_H}, 2")
    a(f"s_add_u32 s{S_P}, s{S_P}, s{S_SPLIT}")
    a(f"s_lshl_b32 s{S_BP}, s{S_B}, 7")
    a(f"s_add_u32 s{S_BP}, s{S_BP}, s{S_P}")
    for r in range(8):
        a(f"s_mov_b32 s{S_SOFF+r}, {r*3072}")
    J, C = V_U, V_U + 1
    a(f"v_lshrrev_b32 v{J}, 3, v{V_LANE}")
    a(f"v_and_b32 v{C}, 7, v{V_LANE}")
    g.c("x offsets: stats 20*lane ; own 20*(8w+j)")
    XA, XB = V_A, V_A + 1
    a(f"v_mul_u32_u24 v{XA}, 20, v{V_LANE}")
    a(f"s_lshl_b32 s{S_T0}, s{S_WAVE}, 3")
    a(f"v_add_u32 v{XB}, s{S_T0}, v{J}")
    a(f"v_mul_u32_u24 v{V_A+2}, 10, v{XB}")
    a(f"v_mul_u32_u24 v{XB}, 20, v{XB}")
    g.c("wq voffset = row0*12288 + c*16")
    WQA = V_A + 3
    a(f"v_mul_u32_u24 v{WQA}, 0x3000, v{V_A+2}")
    a(f"v_lshl_add_u32 v{WQA}, v{C}, 4, v{WQA}")
    g.c("kv voffset = w*98304 + j*384 + c*16")
    a(f"v_mul_u32_u24 v{V_KV}, 0x180, v{J}")
    a(f"v_lshl_add_u32 v{V_KV}, v{C}, 4, v{V_KV}")
    a(f"s_mul_i32 s{S_T0}, s{S_WAVE}, 98304")
    a(f"v_add_u32 v{V_KV}, s{S_T0}, v{V_KV}")
    g.c("glu offset (32-bit part) = (row0+1)*3072 + p*24 + min(c&3,2)*8")
    GO = V_U + 2
    a(f"v_mul_u32_u24 v{GO}, 0xc00, v{V_A+2}")
    a(f"v_and_b32 v{T[0]}, 3, v{C}")
    a(f"v_min_u32 v{T[0]}, 2, v{T[0]}")
    a(f"v_lshl_add_u32 v{GO}, v{T[0]}, 3, v{GO}")
    a(f"s_mul_i32 s{S_T0}, s{S_P}, 24")
    a(f"s_add_u32 s{S_T0}, s{S_T0}, 3072")
    a(f"v_add_u32 v{GO}, s{S_T0}, v{GO}")
    g.c("clear-store offset: t<320 -> Y + bp*5120 + 16t ; 320..323 -> ML + bp*64 + 16(t-320) ; else OOB")
    CL = V_U + 3
    a(f"s_mul_i32 s{S_T0}, s{S_BP}, 5120")
    a(f"s_add_u32 s{S_T0}, s{S_T0}, {WS_Y}")
    a(f"s_lshl_b32 s{S_T1}, s{S_BP}, 6")
    a(f"s_sub_u32 s{S_T1}, s{S_T1}, {320*16 - WS_ML}")
    a(f"v_mov_b32 v{T[0]}, s{S_T0}")
    a(f"v_mov_b32 v{T[1]}, s{S_T1}")
    a(f"v_cmp_gt_u32 vcc, 0x140, v{T[8]}")
    g.nop(2)
    a(f"v_cndmask_b32 v{CL}, v{T[1]}, v{T[0]}, vcc")
    a(f"v_lshl_add_u32 v{CL}, v{T[8]}, 4, v{CL}")
    a(f"v_mov_b32 v{T[0]}, {OOB}")
    a(f"v_cmp_gt_u32 vcc, 0x144, v{T[8]}")
    g.nop(2)
    a(f"v_cndmask_b32 v{CL}, v{T[0]}, v{CL}, vcc")
    g.c("sentinel data in v28..31 (S regs, free now)")
    for k in range(4):
        a(f"v_mov_b32 v{V_S+k}, -1")
    a(f"v_cmp_gt_u32 vcc, 4, v{C}")
    a("s_waitcnt lgkmcnt(0)")
    stamp(g, 0)
    g.c("SRDs")
    a(f"s_mul_i32 s{S_T0}, s{S_B}, 1280")
    srd_off(g, R_X, S_X, S_T0, 1280)
    a(f"buffer_load_dwordx4 v[{T[0]}:{T[3]}], v{XA}, s[{R_X}:{R_X+3}], 0 offen")
    a(f"buffer_load_dword v{T[4]}, v{XA}, s[{R_X}:{R_X+3}], 0 offen offset:16")
    a(f"buffer_load_dwordx4 v[{V_XO}:{V_XO+3}], v{XB}, s[{R_X}:{R_X+3}], 0 offen")
    a(f"buffer_load_dword v{T[5]}, v{XB}, s[{R_X}:{R_X+3}], 0 offen offset:16")
    a(f"s_mul_i32 s{S_T0}, s{S_H}, 384")
    a(f"s_sub_u32 s{S_T1}, 7864320, s{S_T0}")
    srd_off(g, R_WQ, S_WQ, S_T0, f"s{S_T1}")
    a(f"s_lshl_b32 s{S_T0}, s{S_B}, 5")
    a(f"s_add_u32 s{S_T0}, s{S_T0}, s{S_H}")
    a(f"s_mul_i32 s{S_T0}, s{S_T0}, 3145728")
    a(f"s_mul_i32 s{S_T1}, s{S_SPLIT}, 786432")
    a(f"s_add_u32 s{S_T0}, s{S_T0}, s{S_T1}")
    srd_off(g, R_KV, S_K, S_T0, 786432)
    a(f"s_add_u32 s{S_V}, s{S_V}, s{S_T0}")
    a(f"s_addc_u32 s{S_V+1}, s{S_V+1}, 0")
    srd(g, R_WS, S_WS, S_WS + 1, WS_REC)
    g.c("glu 64-bit address in v[12:13]")
    GA = T[6]
    assert GA % 2 == 0
    a(f"v_mov_b32 v{GA}, s{S_WU}")
    a(f"v_mov_b32 v{XA}, s{S_WG}")
    a(f"v_cndmask_b32 v{GA}, v{GA}, v{XA}, vcc")
    a(f"v_mov_b32 v{GA+1}, s{S_WU+1}")
    a(f"v_mov_b32 v{XA}, s{S_WG+1}")
    a(f"v_cndmask_b32 v{GA+1}, v{GA+1}, v{XA}, vcc")
    a(f"v_add_co_u32 v{GA}, vcc, v{GA}, v{GO}")
    g.nop(2)
    a(f"v_addc_co_u32 v{GA+1}, vcc, 0, v{GA+1}, vcc")
    a(f"s_mov_b32 s{S_PAIR}, 9216")
    a(f"s_mov_b32 s{S_PAIR+1}, 0")
    a(f"buffer_store_dwordx4 v[{V_S}:{V_S+3}], v{CL}, s[{R_WS}:{R_WS+3}], 0 offen sc1")
    Q = ["x0", "x1", "x2", "x3", "clr"]
    def wq_loads(gg):
        a(f"s_mov_b32 s{S_T0}, {gg*12288}")
        for t in range(3):
            v = V_W + (gg * 3 + t) * 4
            a(f"buffer_load_dwordx4 v[{v}:{v+3}], v{WQA}, s[{R_WQ}:{R_WQ+3}], s{S_T0} offen offset:{t*128}{wf}")
            Q.append(f"wq{gg}")
        off = (gg % 3 - 1) * 3072
        v = V_GLU + gg * 2
        a(f"global_load_dwordx2 v[{v}:{v+1}], v[{GA}:{GA+1}], off offset:{off}{wf}")
        Q.append(f"wq{gg}")
        if gg % 3 == 2:
            a(f"v_lshl_add_u64 v[{GA}:{GA+1}], v[{GA}:{GA+1}], 0, s[{S_PAIR}:{S_PAIR+1}]")
    def kq(r):
        ring_loads(g, r)
        Q.extend([f"k{r}"] * 3)
    order = g.o["order"]
    if order == "wq_first":
        for gg in range(10): wq_loads(gg)
        for r in range(6): kq(r)
    elif order == "k_first":
        for r in range(6): kq(r)
        for gg in range(10): wq_loads(gg)
    elif order == "mix":
        kq(0); wq_loads(0); wq_loads(1); kq(1); wq_loads(2); wq_loads(3); kq(2); wq_loads(4); wq_loads(5)
        kq(3); wq_loads(6); wq_loads(7); kq(4); wq_loads(8); wq_loads(9); kq(5)
    elif order == "k2":
        kq(0); kq(1)
        for gg in range(10): wq_loads(gg)
        for r in range(2, 6): kq(r)
    def wait_for(tag):
        idx = max(i for i, x in enumerate(Q) if x == tag)
        n = len(Q) - 1 - idx
        return min(n, 63)
    g.c("remaining SRDs + masks while loads fly")
    a(f"s_mul_i32 s{S_T0}, s{S_H}, 245760")
    srd_off(g, R_WO, S_WO, S_T0, 245760)
    a(f"s_mul_i32 s{S_T0}, s{S_P}, 15360")
    srd_off(g, R_WD, S_WD, S_T0, 15360)
    srd(g, R_DBG, S_DBG, S_DBG + 1, 256)
    srd(g, R_OUT, S_OUT, S_OUT + 1, 2560)
    a(f"s_mov_b32 s{S_C0}, {LOG2E:#x}")
    a(f"v_and_b32 v{V_A}, 1, v{C}")
    a(f"v_lshlrev_b32 v{V_A}, 4, v{V_A}")
    a(f"v_mov_b32 v{V_A+1}, 0xffff")
    a(f"v_lshlrev_b32 v{V_A}, v{V_A}, v{V_A+1}")
    a(f"v_lshrrev_b32 v{V_A+1}, 1, v{C}")
    for k in range(4):
        a(f"v_cmp_eq_u32 vcc, {k}, v{V_A+1}")
        g.nop(2)
        a(f"v_cndmask_b32 v{V_M+k}, 0, v{V_A}, vcc")
    g.c("zero accumulators (q D: v16..27, glu D: v28..31); the clear store has long been issued")
    for k in range(16):
        a(f"v_mov_b32 v{V_Q+k}, 0")
    g.c("layernorm stats")
    a(f"s_mov_b32 s{S_T0}, 0x3f803f80")
    a(f"v_mov_b32 v{V_A}, 0")
    a(f"s_waitcnt vmcnt({wait_for('x3')})")
    stamp(g, 1)
    for k in range(5):
        a(f"v_dot2c_f32_bf16 v{V_A}, s{S_T0}, v{T[k]}")
    g.nop(3)
    reduce_row16(g, "v_add_f32", [V_A])
    reduce_rows(g, "v_add_f32", V_A, V_A + 1)
    a(f"v_mul_f32 v{V_A}, {f2u(1.0/640):#x}, v{V_A}")
    a(f"v_mov_b32 v{V_A+1}, 0")
    for k in range(5):
        a(f"v_lshlrev_b32 v{V_A+2}, 16, v{T[k]}")
        a(f"v_and_b32 v{V_A+3}, 0xffff0000, v{T[k]}")
        a(f"v_sub_f32 v{V_A+2}, v{V_A+2}, v{V_A}")
        a(f"v_sub_f32 v{V_A+3}, v{V_A+3}, v{V_A}")
        a(f"v_fmac_f32 v{V_A+1}, v{V_A+2}, v{V_A+2}")
        a(f"v_fmac_f32 v{V_A+1}, v{V_A+3}, v{V_A+3}")
    g.nop(2)
    reduce_row16(g, "v_add_f32", [V_A + 1])
    reduce_rows(g, "v_add_f32", V_A + 1, V_A + 2)
    a(f"v_mul_f32 v{V_A+1}, {f2u(1.0/640):#x}, v{V_A+1}")
    MB, RSD = T[0], T[1]
    bf16r(g, MB, V_A)
    bf16r(g, RSD, V_A + 1)
    a(f"v_add_f32 v{RSD}, 0x37280000, v{RSD}")
    bf16r(g, RSD, RSD)
    a(f"v_sqrt_f32 v{RSD}, v{RSD}")
    g.nop(1)
    bf16r(g, RSD, RSD)
    a(f"v_rcp_f32 v{RSD}, v{RSD}")
    g.c("q projection + gate/up via selector MFMA")
    xo = [V_XO, V_XO + 1, V_XO + 2, V_XO + 3, T[5]]
    X = T[2]
    for gg in range(10):
        src = xo[gg >> 1]
        if gg & 1:
            a(f"v_and_b32 v{X}, 0xffff0000, v{src}")
        else:
            a(f"v_lshlrev_b32 v{X}, 16, v{src}")
        a(f"v_sub_f32 v{X}, v{X}, v{MB}")
        bf16r(g, X, X)
        a(f"v_mul_f32 v{X}, v{X}, v{RSD}")
        a(f"v_cvt_pk_bf16_f32 v{X}, v{X}, v{X}")
        for k in range(4):
            a(f"v_and_b32 v{V_A+k}, v{X}, v{V_M+k}")
        a(f"s_waitcnt vmcnt({wait_for(f'wq{gg}')})")
        g.nop(1)
        for t in range(3):
            acc = V_Q + 4 * t
            b = V_W + (gg * 3 + t) * 4
            a(f"v_mfma_f32_16x16x32_bf16 v[{acc}:{acc+3}], v[{V_A}:{V_A+3}], v[{b}:{b+3}], v[{acc}:{acc+3}]")
        b = V_GLU + gg * 2
        a(f"v_mfma_f32_16x16x16_bf16 v[{V_S}:{V_S+3}], v[{V_A}:{V_A+1}], v[{b}:{b+1}], v[{V_S}:{V_S+3}]")
    stamp(g, 2)
    g.c("late ring groups 6,7")
    kq(6); kq(7)
    g.c("RED write address: (2w+half)*1040 + (8*(n&7) + 4*(gq&1))*4 ; half = lane>>5, gq&1 = (lane>>4)&1")
    RA = T[3]
    a(f"v_lshrrev_b32 v{RA}, 5, v{V_LANE}")
    a(f"s_lshl_b32 s{S_T0}, s{S_WAVE}, 1")
    a(f"v_add_u32 v{RA}, s{S_T0}, v{RA}")
    a(f"v_mul_u32_u24 v{RA}, {RED_STRIDE}, v{RA}")
    a(f"v_lshl_add_u32 v{RA}, v{C}, 5, v{RA}")
    a(f"v_and_b32 v{T[4]}, 16, v{V_LANE}")
    a(f"v_add_u32 v{RA}, v{RA}, v{T[4]}")
    a("s_mov_b32 exec_lo, 0x00ff00ff")
    a("s_mov_b32 exec_hi, 0xff00ff00")
    g.nop(2)
    for t in range(4):
        a(f"ds_write_b128 v{RA}, v[{V_Q+4*t}:{V_Q+4*t+3}] offset:{L_RED + t*256}")
    a("s_mov_b64 exec, -1")
    a("s_waitcnt lgkmcnt(0)")
    a("s_barrier")
    g.c("waves 0,1 reduce 16 partials -> packed bf16 ; wave 2 signals 'cleared'")
    a(f"s_cmp_lt_u32 s{S_WAVE}, 2")
    a("s_cbranch_scc0 L_q_skip")
    a(f"v_lshlrev_b32 v{T[0]}, 3, v{T[8]}")
    for i in range(8):
        a(f"ds_read_b64 v[{V_Q+2*i}:{V_Q+2*i+1}], v{T[0]} offset:{L_RED + i*RED_STRIDE}")
    a("s_waitcnt lgkmcnt(0)")
    for i in range(1, 8):
        a(f"v_add_f32 v{V_Q}, v{V_Q}, v{V_Q+2*i}")
        a(f"v_add_f32 v{V_Q+1}, v{V_Q+1}, v{V_Q+2*i+1}")
    a(f"v_mov_b32 v{V_A}, v{V_Q}")
    a(f"v_mov_b32 v{V_A+1}, v{V_Q+1}")
    for i in range(8):
        a(f"ds_read_b64 v[{V_Q+2*i}:{V_Q+2*i+1}], v{T[0]} offset:{L_RED + (8+i)*RED_STRIDE}")
    a("s_waitcnt lgkmcnt(0)")
    for i in range(8):
        a(f"v_add_f32 v{V_A}, v{V_A}, v{V_Q+2*i}")
        a(f"v_add_f32 v{V_A+1}, v{V_A+1}, v{V_Q+2*i+1}")
    a(f"v_cvt_pk_bf16_f32 v{V_A}, v{V_A}, v{V_A+1}")
    a(f"v_lshlrev_b32 v{T[0]}, 2, v{T[8]}")
    a(f"ds_write_b32 v{T[0]}, v{V_A} offset:{L_QP}")
    a("s_waitcnt lgkmcnt(0)")
    g.lab("L_q_skip")
    g.c("cleared counter: every wave issues the atomic, only tid==128 is in range")
    a(f"v_mov_b32 v{T[0]}, {OOB}")
    a(f"v_cmp_ne_u32 vcc, 0x80, v{T[8]}")
    a(f"v_mov_b32 v{T[1]}, 1")
    g.nop(1)
    a(f"v_cndmask_b32 v{T[0]}, 0, v{T[0]}, vcc")
    a(f"buffer_atomic_add v{T[1]}, v{T[0]}, s[{R_DBG}:{R_DBG+3}], 0 offen sc1")
    Q.append("atom")
    a("s_barrier")
    a(f"v_lshlrev_b32 v{T[2]}, 4, v{C}")
    for t in range(3):
        a(f"ds_read_b128 v[{V_Q+4*t}:{V_Q+4*t+3}], v{T[2]} offset:{L_QP + t*128}")
    g.c("wo / wdown voffsets")
    WOA, WDA = T[6], T[7]
    I16, S4 = T[3], T[4]
    a(f"v_and_b32 v{I16}, 15, v{V_LANE}")
    a(f"v_lshrrev_b32 v{S4}, 4, v{V_LANE}")
    a(f"v_mul_u32_u24 v{WOA}, 7680, v{S4}")
    a(f"v_lshl_add_u32 v{WOA}, v{I16}, 4, v{WOA}")
    a(f"s_mul_i32 s{S_T0}, s{S_WAVE}, 30720")
    a(f"v_add_u32 v{WOA}, s{S_T0}, v{WOA}")
    a(f"v_mul_u32_u24 v{WDA}, 1280, v{S4}")
    a(f"v_lshl_add_u32 v{WDA}, v{I16}, 4, v{WDA}")
    a(f"s_lshl_b32 s{S_T0}, s{S_WAVE}, 8")
    a(f"s_cmp_lt_u32 s{S_WAVE}, 5")
    a(f"s_cselect_b32 s{S_T0}, s{S_T0}, {OOB}")
    a(f"v_add_u32 v{WDA}, s{S_T0}, v{WDA}")
    a(f"s_mov_b32 s{S_C1}, 3840")
    a(f"s_mov_b32 s{S_C2}, 5120")
    a(f"s_mov_b32 s{S_C3}, 10240")
    g.c("ml address = ML + (bp>>2)*256 + (lane&31)*8")
    a(f"v_and_b32 v{V_MLA}, 31, v{V_LANE}")
    a(f"v_lshlrev_b32 v{V_MLA}, 3, v{V_MLA}")
    a(f"s_lshr_b32 s{S_T0}, s{S_BP}, 2")
    a(f"s_lshl_b32 s{S_T0}, s{S_T0}, 8")
    a(f"v_add_u32 v{V_MLA}, s{S_T0}, v{V_MLA}")
    a("s_waitcnt lgkmcnt(0)")
    stamp(g, 3)
    g.c("=== K iteration 0 (peeled, carries wo / wdown loads) ===")
    def wo_load(idx):
        g6, Tt = divmod(idx, 5)
        v = V_W + idx * 4
        so, off = ("0", g6 * 1280 + Tt * 256) if g6 < 3 else (f"s{S_C1}", (g6 - 3) * 1280 + Tt * 256)
        a(f"buffer_load_dwordx4 v[{v}:{v+3}], v{WOA}, s[{R_WO}:{R_WO+3}], {so} offen offset:{off}{wf}")
    def wd_load(g3):
        v = V_W + (27 + g3) * 4
        so = ["0", f"s{S_C2}", f"s{S_C3}"][g3]
        a(f"buffer_load_dwordx4 v[{v}:{v+3}], v{WDA}, s[{R_WD}:{R_WD+3}], {so} offen{wf}")
    extras = [("wd", i) for i in range(3)] + [("wo", i) for i in range(27)]
    a(f"v_add_u32 v{V_KV}, 24576, v{V_KV}")
    k_iter_head(g)
    for r in range(8):
        w = wait_for(f"k{r}")
        Q[:] = [x if x != f"k{r}" else "done" for x in Q]
        mine = extras[r*4:(r+1)*4]
        def ex(mine=mine):
            for kind, i in mine:
                (wo_load if kind == "wo" else wd_load)(i)
        k_group(g, r, w, ex)
        Q.extend([f"k{r}"] * 3)
        Q.extend(["w"] * len(mine))
    g.c("=== K loop, iterations 1..3 ===")
    a(f"s_mov_b32 s{S_IT}, 1")
    a(f"v_mov_b32 v{T[2]}, 0")
    g.lab("L_kloop")
    a(f"buffer_load_dword v{V_CNT}, v{T[2]}, s[{R_DBG}:{R_DBG+3}], 0 offen sc1")
    a(f"s_cmp_eq_u32 s{S_IT}, 3")
    a(f"s_cselect_b32 s{R_KV}, s{S_V}, s{R_KV}")
    a(f"s_cselect_b32 s{R_KV+1}, s{S_V+1}, s{R_KV+1}")
    a(f"s_movk_i32 s{S_T0}, 24576")
    a(f"s_cselect_b32 s{S_T0}, {(-3*24576) & 0xffffffff:#x}, s{S_T0}")
    a(f"v_add_u32 v{V_KV}, s{S_T0}, v{V_KV}")
    k_iter_head(g)
    for r in range(8):
        k_group(g, r, 21)
    a(f"s_add_u32 s{S_IT}, s{S_IT}, 1")
    a(f"s_cmp_lt_u32 s{S_IT}, 4")
    a("s_cbranch_scc1 L_kloop")
    stamp(g, 4)
    g.c("=== transition: softmax numerators ===")
    a(f"s_mov_b32 s{S_T0}, {SCALE:#x}")
    for k in range(4):
        bf16r(g, V_S + k, V_S + k)
        a(f"v_mul_f32 v{V_S+k}, s{S_T0}, v{V_S+k}")
        bf16r(g, V_S + k, V_S + k)
    MX, LS = V_ML, V_ML + 1
    a(f"v_max_f32 v{MX}, v{V_S}, v{V_S+1}")
    a(f"v_max3_f32 v{MX}, v{V_S+2}, v{V_S+3}, v{MX}")
    g.nop(2)
    reduce_row16(g, "v_max_f32", [MX])
    reduce_rows(g, "v_max_f32", MX, T[0])
    for k in range(4):
        a(f"v_sub_f32 v{V_S+k}, v{V_S+k}, v{MX}")
        a(f"v_mul_f32 v{V_S+k}, s{S_C0}, v{V_S+k}")
        a(f"v_exp_f32 v{V_S+k}, v{V_S+k}")
    a(f"v_readfirstlane_b32 s{S_MW}, v{MX}")
    a(f"v_add_f32 v{LS}, v{V_S}, v{V_S+1}")
    a(f"v_add_f32 v{LS}, v{LS}, v{V_S+2}")
    a(f"v_add_f32 v{LS}, v{LS}, v{V_S+3}")
    for k in range(4):
        a(f"v_cvt_pk_bf16_f32 v{V_S+k}, v{V_S+k}, v{V_S+k}")
    reduce_row16(g, "v_add_f32", [LS])
    reduce_rows(g, "v_add_f32", LS, T[0])
    a(f"v_min_u32 v{MX}, -2, v{MX}")
    a(f"v_min_u32 v{LS}, -2, v{LS}")
    g.c("publish (m,l): lane 0 only")
    a(f"s_lshl_b32 s{S_T0}, s{S_BP}, 6")
    a(f"s_lshl_b32 s{S_T1}, s{S_WAVE}, 3")
    a(f"s_add_u32 s{S_T0}, s{S_T0}, s{S_T1}")
    a(f"v_mov_b32 v{T[0]}, s{S_T0}")
    a("s_mov_b64 exec, 1")
    a(f"buffer_store_dwordx2 v[{MX}:{LS}], v{T[0]}, s[{R_WS}:{R_WS+3}], 0 offen sc1")
    a("s_mov_b64 exec, -1")
    g.c("GLU: h and down projection")
    HA = T[0]
    a(f"v_lshrrev_b32 v{HA}, 4, v{V_LANE}")
    a(f"v_lshlrev_b32 v{HA}, 1, v{HA}")
    G0, U0 = V_Q, V_Q + 3
    for g3 in range(3):
        a(f"ds_read_u16 v{G0+g3}, v{HA} offset:{L_QP + 384 + 16*g3}")
        a(f"ds_read_u16 v{U0+g3}, v{HA} offset:{L_QP + 448 + 16*g3}")
    g.c("lane-valid mask for 16x4 layout: (lane&8)==0")
    LV = T[1]
    a(f"v_and_b32 v{LV}, 8, v{V_LANE}")
    a(f"v_cmp_eq_u32 vcc, 0, v{LV}")
    a("s_waitcnt lgkmcnt(0)")
    g.nop(1)
    a(f"v_cndmask_b32 v{LV}, 0, -1, vcc")
    DB = V_Q + 8
    for g3 in range(3):
        gg_, uu = G0 + g3, U0 + g3
        a(f"v_lshlrev_b32 v{gg_}, 16, v{gg_}")
        a(f"v_lshlrev_b32 v{uu}, 16, v{uu}")
        a(f"v_mul_f32 v{gg_}, s{S_C0}, v{gg_}")
        a(f"v_exp_f32 v{gg_}, -v{gg_}")
        g.nop(1)
        a(f"v_add_f32 v{gg_}, 1.0, v{gg_}")
        a(f"v_rcp_f32 v{gg_}, v{gg_}")
        g.nop(1)
        bf16r(g, gg_, gg_)
        a(f"v_mul_f32 v{gg_}, v{gg_}, v{uu}")
        a(f"v_cvt_pk_bf16_f32 v{gg_}, v{gg_}, v{gg_}")
        a(f"v_and_b32 v{gg_}, v{gg_}, v{LV}")
        for k in range(4):
            a(f"v_and_b32 v{V_A+k}, v{gg_}, v{V_M+k}")
        g.nop(2)
        b = V_W + (27 + g3) * 4
        cc = "0" if g3 == 0 else f"v[{DB}:{DB+3}]"
        a(f"v_mfma_f32_16x16x32_bf16 v[{DB}:{DB+3}], v[{V_A}:{V_A+3}], v[{b}:{b+3}], {cc}")
    g.c("remaining wo tiles")
    for i in range(27, 30):
        wo_load(i)
    g.c("YB store offset: Y + bp*5120 + 2560 + (128w + 8n + 4gq)*4, lanes<32, waves<5")
    YA_ = T[2]
    a(f"v_and_b32 v{YA_}, 15, v{V_LANE}")
    a(f"v_lshlrev_b32 v{YA_}, 5, v{YA_}")
    a(f"v_and_b32 v{T[3]}, 16, v{V_LANE}")
    a(f"v_add_u32 v{YA_}, v{YA_}, v{T[3]}")
    a(f"s_mul_i32 s{S_T0}, s{S_BP}, 5120")
    a(f"s_lshl_b32 s{S_T1}, s{S_WAVE}, 9")
    a(f"s_add_u32 s{S_T0}, s{S_T0}, s{S_T1}")
    a(f"s_add_u32 s{S_T0}, s{S_T0}, {WS_Y + 2560}")
    a(f"s_cmp_lt_u32 s{S_WAVE}, 5")
    a(f"s_cselect_b32 s{S_T0}, s{S_T0}, {OOB}")
    a(f"v_add_u32 v{T[3]}, s{S_T0}, v{YA_}")
    for k in range(4):
        a(f"v_min_u32 v{V_A+k}, -2, v{DB+k}")
    a("s_mov_b32 exec_hi, 0")
    a(f"buffer_store_dwordx4 v[{V_A}:{V_A+3}], v{T[3]}, s[{R_WS}:{R_WS+3}], 0 offen sc1")
    a("s_mov_b32 exec_hi, -1")
    g.c("check cleared counter")
    a(f"v_readfirstlane_b32 s{S_T0}, v{V_CNT}")
    a(f"s_mov_b32 s{S_SPIN}, 0")
    for k in range(12):
        a(f"v_mov_b32 v{V_Q+k}, 0")
    a(f"v_mov_b32 v{T[2]}, 0")
    g.lab("L_clr_spin")
    a(f"s_cmp_ge_u32 s{S_T0}, 256")
    a("s_cbranch_scc1 L_clr_ok")
    a(f"s_add_u32 s{S_SPIN}, s{S_SPIN}, 1")
    a(f"s_cmp_ge_u32 s{S_SPIN}, {SPIN_MAX}")
    a("s_cbranch_scc1 L_clr_ok")
    a("s_sleep 8")
    a(f"buffer_load_dword v{V_CNT}, v{T[2]}, s[{R_DBG}:{R_DBG+3}], 0 offen sc1")
    a("s_waitcnt vmcnt(0)")
    a(f"v_readfirstlane_b32 s{S_T0}, v{V_CNT}")
    g.nop(4)
    a("s_branch L_clr_spin")
    g.lab("L_clr_ok")
    stamp(g, 5)
    g.c("=== V loop ===")
    a(f"s_mov_b32 s{S_IT}, 0")
    a(f"v_mov_b32 v{V_ML}, -1")
    a(f"v_mov_b32 v{V_ML+1}, -1")
    g.lab("L_vloop")
    a(f"v_add_u32 v{V_KV}, 24576, v{V_KV}")
    a(f"s_cmp_eq_u32 s{S_IT}, 3")
    a(f"s_cselect_b32 s{R_KV+2}, 0, s{R_KV+2}")
    for r in range(8):
        v_group(g, r, 21)
        if r == 1:
            ml_eval(g)
            ml_load(g)
    a(f"v_mov_b32 v{V_S+3}, v{V_S+2}")
    a(f"v_mov_b32 v{V_S+2}, v{V_S+1}")
    a(f"v_mov_b32 v{V_S+1}, v{V_S}")
    a(f"s_add_u32 s{S_IT}, s{S_IT}, 1")
    a(f"s_cmp_lt_u32 s{S_IT}, 4")
    a("s_cbranch_scc1 L_vloop")
    stamp(g, 6)
    g.c("=== tail ===")
    a(f"s_mov_b32 s{S_SPIN}, 0")
    g.lab("L_ml_chk")
    a(f"s_cmp_eq_u64 s[{S_VALID}:{S_VALID+1}], 0")
    a("s_cbranch_scc1 L_ml_ok")
    a(f"s_add_u32 s{S_SPIN}, s{S_SPIN}, 1")
    a(f"s_cmp_ge_u32 s{S_SPIN}, {SPIN_MAX}")
    a("s_cbranch_scc1 L_ml_ok")
    a("s_waitcnt vmcnt(0)")
    ml_load(g)
    a("s_waitcnt vmcnt(0)")
    ml_eval(g)
    a("s_branch L_ml_chk")
    g.lab("L_ml_ok")
    RA = T[0]
    a(f"v_lshrrev_b32 v{RA}, 5, v{V_LANE}")
    a(f"s_lshl_b32 s{S_T0}, s{S_WAVE}, 1")
    a(f"v_add_u32 v{RA}, s{S_T0}, v{RA}")
    a(f"v_mul_u32_u24 v{RA}, {RED_STRIDE}, v{RA}")
    a(f"v_and_b32 v{T[1]}, 7, v{V_LANE}")
    a(f"v_lshl_add_u32 v{RA}, v{T[1]}, 5, v{RA}")
    a(f"v_and_b32 v{T[1]}, 16, v{V_LANE}")
    a(f"v_add_u32 v{RA}, v{RA}, v{T[1]}")
    for k in range(12):
        a(f"v_mul_f32 v{V_Q+k}, v{V_Q+k}, v{V_F}")
    a("s_mov_b32 exec_lo, 0x00ff00ff")
    a("s_mov_b32 exec_hi, 0xff00ff00")
    for t in range(3):
        a(f"ds_write_b128 v{RA}, v[{V_Q+4*t}:{V_Q+4*t+3}] offset:{L_RED + t*256}")
    a("s_mov_b64 exec, -1")
    g.c("read address: i*1040 + (24w + 6s)*4 ; masks for 16x4 layout")
    RB = T[1]
    a(f"v_and_b32 v{RB}, 15, v{V_LANE}")
    a(f"v_mul_u32_u24 v{RB}, {RED_STRIDE}, v{RB}")
    a(f"v_lshrrev_b32 v{T[2]}, 4, v{V_LANE}")
    a(f"v_mul_u32_u24 v{T[2]}, 24, v{T[2]}")
    a(f"s_mul_i32 s{S_T0}, s{S_WAVE}, 96")
    a(f"v_add3_u32 v{RB}, v{RB}, v{T[2]}, s{S_T0}")
    a(f"v_and_b32 v{T[2]}, 8, v{V_LANE}")
    a(f"v_cmp_eq_u32 vcc, 0, v{T[2]}")
    g.nop(2)
    for k in range(4):
        a(f"v_cndmask_b32 v{V_M+k}, 0, v{V_M+k}, vcc")
    g.c("YR write address: w*2560 + (8n + 4gq)*4")
    YW = T[2]
    a(f"v_and_b32 v{YW}, 15, v{V_LANE}")
    a(f"v_lshlrev_b32 v{YW}, 5, v{YW}")
    a(f"v_and_b32 v{T[3]}, 16, v{V_LANE}")
    a(f"s_mul_i32 s{S_T0}, s{S_WAVE}, 2560")
    a(f"v_add3_u32 v{YW}, v{YW}, v{T[3]}, s{S_T0}")
    a("s_waitcnt vmcnt(0) lgkmcnt(0)")
    a("s_barrier")
    O = V_Q
    for k in range(3):
        a(f"ds_read_b64 v[{O+2*k}:{O+2*k+1}], v{RB} offset:{L_RED + 8*k}")
    a("s_waitcnt lgkmcnt(0)")
    reduce_row16(g, "v_add_f32", [O + k for k in range(6)])
    for k in range(6):
        a(f"v_cvt_pk_bf16_f32 v{O+k}, v{O+k}, v{O+k}")
    YD = V_RING
    for g6 in range(6):
        A = V_A if g6 % 2 == 0 else V_U
        for k in range(4):
            a(f"v_and_b32 v{A+k}, v{O+g6}, v{V_M+k}")
        g.nop(2)
        for Tt in range(5):
            b = V_W + (g6 * 5 + Tt) * 4
            d = YD + Tt * 4
            cc = "0" if g6 == 0 else f"v[{d}:{d+3}]"
            a(f"v_mfma_f32_16x16x32_bf16 v[{d}:{d+3}], v[{A}:{A+3}], v[{b}:{b+3}], {cc}")
    a("s_mov_b32 exec_hi, 0")
    g.nop(4)
    for Tt in range(5):
        d = YD + Tt * 4
        if Tt == 4: g.nop(4)
        a(f"ds_write_b128 v{YW}, v[{d}:{d+3}] offset:{L_YR + Tt*512}")
    a("s_mov_b32 exec_hi, -1")
    a("s_waitcnt lgkmcnt(0)")
    a("s_barrier")
    stamp(g, 7)
    a(f"s_cmp_lt_u32 s{S_WAVE}, 3")
    a("s_cbranch_scc0 L_not_pub")
    g.c("waves 0..2: threads<160 sum 8 partials and publish YA")
    TID = T[0]
    a(f"s_lshl_b32 s{S_T0}, s{S_WAVE}, 6")
    a(f"v_add_u32 v{TID}, s{S_T0}, v{V_LANE}")
    a(f"v_cmp_gt_u32 vcc, 0xa0, v{TID}")
    a(f"v_lshlrev_b32 v{TID}, 4, v{TID}")
    a(f"s_and_saveexec_b64 s[{S_PAIR}:{S_PAIR+1}], vcc")
    Y = V_RING + 24
    for i in range(8):
        a(f"ds_read_b128 v[{Y+4*i}:{Y+4*i+3}], v{TID} offset:{L_YR + i*2560}")
    a(f"s_mul_i32 s{S_T0}, s{S_BP}, 5120")
    a(f"s_add_u32 s{S_T0}, s{S_T0}, {WS_Y}")
    for i in range(1, 8):
        a(f"s_waitcnt lgkmcnt({7-i})")
        for k in range(4):
            a(f"v_add_f32 v{Y+k}, v{Y+k}, v{Y+4*i+k}")
    for k in range(4):
        a(f"v_min_u32 v{Y+k}, -2, v{Y+k}")
    a(f"buffer_store_dwordx4 v[{Y}:{Y+3}], v{TID}, s[{R_WS}:{R_WS+3}], s{S_T0} offen sc1")
    a("s_mov_b64 exec, -1")
    stamp(g, 8)
    a("s_branch L_fin")
    g.lab("L_not_pub")
    a(f"s_cmp_eq_u32 s{S_WAVE}, 7")
    a("s_cbranch_scc0 L_fin")
    a("s_cmp_lt_u32 s2, 80")
    a("s_cbranch_scc0 L_fin")
    g.c("=== consumer: unit s2 : b = s2/40, cc = s2%40 ===")
    a(f"s_cmp_ge_u32 s2, 40")
    a(f"s_cselect_b32 s{S_T0}, 1, 0")
    a(f"s_mul_i32 s{S_T1}, s{S_T0}, 40")
    a(f"s_sub_u32 s{S_T1}, s2, s{S_T1}")
    CA, XA2 = T[0], T[1]
    a(f"v_lshrrev_b32 v{CA}, 2, v{V_LANE}")
    a(f"v_mul_u32_u24 v{CA}, 5120, v{CA}")
    a(f"v_and_b32 v{XA2}, 3, v{V_LANE}")
    a(f"v_lshl_add_u32 v{CA}, v{XA2}, 4, v{CA}")
    a(f"s_mul_i32 s{S_T2}, s{S_T0}, {128*5120}")
    a(f"s_lshl_b32 s{S_T3}, s{S_T1}, 6")
    a(f"s_add_u32 s{S_T2}, s{S_T2}, s{S_T3}")
    a(f"s_add_u32 s{S_T2}, s{S_T2}, {WS_Y}")
    a(f"v_add_u32 v{CA}, s{S_T2}, v{CA}")
    for i in range(8):
        a(f"s_mov_b32 s{S_SOFF+i}, {i*81920}")
    g.c("x / out offset = s2*32 + q*8")
    a(f"s_lshl_b32 s{S_T2}, s2, 5")
    a(f"v_lshlrev_b32 v{XA2}, 3, v{XA2}")
    a(f"v_add_u32 v{XA2}, s{S_T2}, v{XA2}")
    srd(g, R_X, S_X, S_X + 1, 2560)
    XV = V_A
    a(f"buffer_load_dwordx2 v[{XV}:{XV+1}], v{XA2}, s[{R_X}:{R_X+3}], 0 offen")
    a(f"s_mov_b32 s{S_SPIN}, 0")
    PA, PB = V_W, V_W + 32
    g.lab("L_poll")
    for i in range(8):
        a(f"buffer_load_dwordx4 v[{PA+4*i}:{PA+4*i+3}], v{CA}, s[{R_WS}:{R_WS+3}], s{S_SOFF+i} offen sc1")
    for i in range(8):
        a(f"buffer_load_dwordx4 v[{PB+4*i}:{PB+4*i+3}], v{CA}, s[{R_WS}:{R_WS+3}], s{S_SOFF+i} offen offset:2560 sc1")
    MXU = T[2]
    a(f"v_mov_b32 v{MXU}, 0")
    for i in range(16):
        a(f"s_waitcnt vmcnt({15-i})")
        v = PA + 4 * i
        a(f"v_max3_u32 v{MXU}, v{v}, v{v+1}, v{MXU}")
        a(f"v_max3_u32 v{MXU}, v{v+2}, v{v+3}, v{MXU}")
    a(f"v_cmp_eq_u32 vcc, -1, v{MXU}")
    a(f"s_add_u32 s{S_SPIN}, s{S_SPIN}, 1")
    a("s_cbranch_vccz L_poll_ok")
    a(f"s_cmp_lt_u32 s{S_SPIN}, {SPIN_MAX}")
    a("s_cbranch_scc1 L_poll")
    g.lab("L_poll_ok")
    for base in (PA, PB):
        for i in range(1, 8):
            for k in range(4):
                a(f"v_add_f32 v{base+k}, v{base+k}, v{base+4*i+k}")
    regs = [PA + k for k in range(4)] + [PB + k for k in range(4)]
    g.nop(2)
    for st in ("row_ror:4", "row_ror:8"):
        for r in regs:
            a(f"v_add_f32_dpp v{r}, v{r}, v{r} {st} {DPPF}")
    TMP = [V_RING + k for k in range(8)]
    for sw in ("v_permlane16_swap_b32", "v_permlane32_swap_b32"):
        for r, t in zip(regs, TMP):
            a(f"v_mov_b32 v{t}, v{r}")
        g.nop(2)
        for r, t in zip(regs, TMP):
            a(f"{sw} v{r}, v{t}")
        g.nop(2)
        for r, t in zip(regs, TMP):
            a(f"v_add_f32 v{r}, v{r}, v{t}")
    for k in range(4):
        bf16r(g, PA + k, PA + k)
        bf16r(g, PB + k, PB + k)
        src = XV + (k >> 1)
        if k & 1:
            a(f"v_and_b32 v{TMP[k]}, 0xffff0000, v{src}")
        else:
            a(f"v_lshlrev_b32 v{TMP[k]}, 16, v{src}")
        a(f"v_add_f32 v{PA+k}, v{TMP[k]}, v{PA+k}")
        bf16r(g, PA + k, PA + k)
        a(f"v_add_f32 v{PA+k}, v{PA+k}, v{PB+k}")
    a(f"v_cvt_pk_bf16_f32 v{PA}, v{PA}, v{PA+1}")
    a(f"v_cvt_pk_bf16_f32 v{PA+1}, v{PA+2}, v{PA+3}")
    a("s_mov_b64 exec, 15")
    a(f"buffer_store_dwordx2 v[{PA}:{PA+1}], v{XA2}, s[{R_OUT}:{R_OUT+3}], 0 offen")
    a("s_mov_b64 exec, -1")
    stamp(g, 9)
    g.lab("L_fin")
    if g.o["stamp"]:
        a(f"s_lshl_b32 s{S_T0}, s2, 3")
        a(f"s_add_u32 s{S_T0}, s{S_T0}, s{S_WAVE}")
        a(f"s_lshl_b32 s{S_T0}, s{S_T0}, 6")
        a(f"s_add_u32 s{S_T0}, s{S_T0}, {WS_STAMP}")
        a(f"v_lshlrev_b32 v{T[0]}, 2, v{V_LANE}")
        a("s_mov_b64 exec, 0xffff")
        a(f"buffer_store_dword v{V_STAMPV}, v{T[0]}, s[{R_WS}:{R_WS+3}], s{S_T0} offen")
    g.lab("L_end")
    a("s_endpgm")
    g.L.append(f""".section .rodata,"a"
.p2align 6
.amdhsa_kernel {NAME}_kernel
  .amdhsa_next_free_vgpr 256
  .amdhsa_next_free_sgpr 96
  .amdhsa_accum_offset 256
  .amdhsa_group_segment_fixed_size 0
  .amdhsa_kernarg_size 96
  .amdhsa_user_sgpr_count 2
  .amdhsa_user_sgpr_kernarg_segment_ptr 1
  .amdhsa_system_sgpr_workgroup_id_x 1
  .amdhsa_float_denorm_mode_32 3
.end_amdhsa_kernel""")
    return "\n".join(g.L) + "\n"

if __name__ == "__main__":
    out = sys.argv[1]
    opts = {}
    for kv in sys.argv[2:]:
        k, v = kv.split("=", 1)
        if v in ("True", "False"): v = v == "True"
        elif v.lstrip("-").isdigit(): v = int(v)
        else: v = v.replace("_SP_", " ")
        opts[k] = v
    open(out, "w").write(build(**opts))
```

```python
import sys, struct
NAME = "parallel_sum__gqa_block_cached__glu_gated_glu__decode"

def f2u(x):
    return struct.unpack("<I", struct.pack("<f", x))[0]

HEADER = """; Kernarg layout for this problem (96 bytes, ptrs only, base s[0:1]):
"""

S_X, S_K, S_V, S_WQ, S_WO, S_WG, S_WU, S_WD, S_OUT, S_DBG, S_WS = 16, 18, 20, 22, 24, 28, 30, 32, 34, 36, 38
R_A, R_B, R_WS, R_DBG, R_X, R_OUT = 40, 44, 52, 56, 60, 64
S_WAVE, S_H, S_I, S_BLK, S_B = 4, 5, 6, 7, 8
S_OFF = 9
S_T0, S_T1, S_T2, S_T3 = 10, 11, 12, 13
S_IT, S_SPIN = 14, 15
S_L2E = 68
S_MB0, S_RS0, S_MB1, S_RS1 = 70, 71, 72, 73
S_K0 = 74
S_W0 = 82
S_ST = 86
V_LANE, V_KV = 0, 1
V_M = 2
V_T = 6
V_STAMP = 15
V_Q = 16
V_S = 28
V_A = 36
V_U = 40
V_RING = 64
V_D = 64
V_XS = 88
V_XO = 100
V_P = 112
V_OLD = 112
V_TILE = 128
def snap(k):
    return [16, 20, 24, 28, 32, 124, 248, 252][k]

WS_QP = 0
WS_GU = 0x60000
WS_RPT = 0x90000
WS_MLG = 0x98000
WS_REC = 0xA0000
WS_Y = 0xD0000
WS_YB = 0x100000
WS_STAMP, WS_SIZE = 0x380000, 0x400000
L_Q, L_ML, L_RED, L_YR = 0, 512, 1024, 1024 + 8 * 768
LDS_BYTES = L_YR + 4096
OOB = 0x7fff0000
LOG2E = f2u(1.4426950408889634)
SCALE = f2u(192 ** -0.5)
DPPF = "row_mask:0xf bank_mask:0xf"
QP1, QP2, HM, RM = "quad_perm:[1,0,3,2]", "quad_perm:[2,3,0,1]", "row_half_mirror", "row_mirror"
SPIN_MAX = 400000
BLKB = 3145728
COORD = 5
WSR = f"s[{R_WS}:{R_WS+3}]"
DBGR = f"s[{R_DBG}:{R_DBG+3}]"

class Gen:
    def __init__(self, **o):
        self.o = dict(stamp=False, d=5, dpre=5, dend=8, nend=1, rot=1, npre=16, sprio=0, qsleep=60, qsleep2=30,
                      pq=0, ps=2, psleep=0, hack=0, snapnt=1, wosleep=0)
        for k in o: assert k in self.o, k
        self.o.update(o)
        self.L = []
        self.Q = []
    def a(self, s): self.L.append("  " + s)
    def lab(self, s): self.L.append(s + ":")
    def c(self, s): self.L.append("  ; " + s)
    def nop(self, n):
        assert 1 <= n <= 16
        self.a(f"s_nop {n-1}")
    def wait_tag(self, tag):
        idx = max(i for i, x in enumerate(self.Q) if x == tag)
        self.a(f"s_waitcnt vmcnt({min(len(self.Q) - 1 - idx, 63)})")
    def pace(self, p):
        if p: self.a(f"s_waitcnt vmcnt({p-1})")
    def stamp(self, idx):
        if not self.o["stamp"]: return
        self.a(f"s_memrealtime s[{S_ST}:{S_ST+1}]")
        self.a("s_waitcnt lgkmcnt(0)")
        self.a(f"v_writelane_b32 v{V_STAMP}, s{S_ST}, {idx}")
    def exec_(self, lo, hi=None):
        if hi is None:
            self.a(f"s_mov_b64 exec, {lo}")
        else:
            self.a(f"s_mov_b32 exec_lo, {lo:#x}")
            self.a(f"s_mov_b32 exec_hi, {hi:#x}")

def srd(g, r, base, nrec, soff=None):
    if soff is None:
        g.a(f"s_mov_b32 s{r}, s{base}")
        g.a(f"s_mov_b32 s{r+1}, s{base+1}")
    else:
        g.a(f"s_add_u32 s{r}, s{base}, s{soff}")
        g.a(f"s_addc_u32 s{r+1}, s{base+1}, 0")
    g.a(f"s_mov_b32 s{r+2}, {nrec}")
    g.a(f"s_mov_b32 s{r+3}, 0x20000")

def dpp_steps(g, op, regs, steps, tail=True):
    for n, st in enumerate(steps):
        for r in regs:
            g.a(f"{op}_dpp v{r}, v{r}, v{r} {st} {DPPF}")
        if len(regs) < 3 and (tail or n < len(steps) - 1):
            g.nop(3 - len(regs))

def swap_reduce(g, op, r, tmp, which):
    for sw in which:
        g.a(f"v_mov_b32 v{tmp}, v{r}")
        g.nop(2)
        g.a(f"v_permlane{sw}_swap_b32 v{r}, v{tmp}")
        g.nop(2)
        g.a(f"{op} v{r}, v{r}, v{tmp}")

def bf16r(g, d, s):
    g.a(f"v_cvt_pk_bf16_f32 v{d}, v{s}, v{s}")
    g.a(f"v_and_b32 v{d}, 0xffff0000, v{d}")

def masks(g, t0, t1):
    g.a(f"v_and_b32 v{t0}, 1, v{V_LANE}")
    g.a(f"v_lshlrev_b32 v{t0}, 4, v{t0}")
    g.a(f"v_mov_b32 v{t1}, 0xffff")
    g.a(f"v_lshlrev_b32 v{t0}, v{t0}, v{t1}")
    g.a(f"v_bfe_u32 v{t1}, v{V_LANE}, 1, 2")
    for k in range(4):
        g.a(f"v_cmp_eq_u32 vcc, {k}, v{t1}")
        g.nop(2)
        g.a(f"v_cndmask_b32 v{V_M+k}, 0, v{t0}, vcc")

def mfma(g, d, A, B, first=False):
    cc = "0" if first else f"v[{d}:{d+3}]"
    g.a(f"v_mfma_f32_16x16x32_bf16 v[{d}:{d+3}], v[{A}:{A+3}], v[{B}:{B+3}], {cc}")

def spin_guard(g, label_retry):
    g.a(f"s_add_u32 s{S_SPIN}, s{S_SPIN}, 1")
    g.a(f"s_cmp_lt_u32 s{S_SPIN}, {SPIN_MAX}")
    g.a(f"s_cbranch_scc1 {label_retry}")

def wait_dbg(g, lab, off, val, tmp, sleep):
    a = g.a
    a(f"s_mov_b32 s{S_SPIN}, 0")
    g.lab(lab)
    a(f"v_mov_b32 v{tmp}, 0")
    a(f"buffer_load_dword v{tmp}, v{tmp}, {DBGR}, 0 offen offset:{off} sc1")
    a("s_waitcnt vmcnt(0)")
    a(f"v_cmp_gt_u32 vcc, {val}, v{tmp}")
    a(f"s_cbranch_vccz {lab}_ok")
    a(f"s_sleep {sleep}")
    spin_guard(g, lab)
    g.lab(lab + "_ok")

def store1(g, val, soff_expr_reg, t0, t1, srdname, off=0):
    a = g.a
    a(f"v_mov_b32 v{t0}, 0")
    a(f"v_mov_b32 v{t1}, {val}")
    g.exec_(1)
    a(f"buffer_store_dword v{t1}, v{t0}, {srdname}, {soff_expr_reg} offen offset:{off} sc1")
    g.exec_(-1)

def rpt_off(g, sreg):
    g.a(f"s_lshl_b32 s{sreg}, s{S_BLK}, 7")
    g.a(f"s_add_u32 s{sreg}, s{sreg}, {WS_RPT}")

def stream(g):
    a = g.a
    o = g.o
    d, dpre, dend, npre = o["d"], o["dpre"], o["dend"], o["npre"]
    T = [V_T + k for k in range(9)]
    g.lab("L_stream")
    g.c("voffset = (split*4+w)*3072 + j*384 + c*16 ; step stride 49152, rotated start")
    a(f"v_lshrrev_b32 v{T[0]}, 3, v{V_LANE}")
    a(f"v_and_b32 v{T[1]}, 7, v{V_LANE}")
    a(f"v_mul_u32_u24 v{V_KV}, 0x180, v{T[0]}")
    a(f"v_lshl_add_u32 v{V_KV}, v{T[1]}, 4, v{V_KV}")
    a(f"s_and_b32 s{S_T0}, s{S_I}, 3")
    a(f"s_lshl_b32 s{S_T0}, s{S_T0}, 2")
    a(f"s_add_u32 s{S_T0}, s{S_T0}, s{S_WAVE}")
    a(f"s_mul_i32 s{S_T0}, s{S_T0}, 3072")
    a(f"v_add_u32 v{V_KV}, s{S_T0}, v{V_KV}")
    a(f"s_lshl_b32 s{S_T0}, s{S_B}, 5")
    a(f"s_add_u32 s{S_T0}, s{S_T0}, s{S_H}")
    a(f"s_mul_i32 s{S_OFF}, s{S_T0}, {o['rot']}")
    a(f"s_and_b32 s{S_OFF}, s{S_OFF}, 63")
    a(f"s_mul_i32 s{S_OFF}, s{S_OFF}, 49152")
    a(f"s_mul_i32 s{S_T0}, s{S_T0}, {BLKB}")
    a("s_waitcnt lgkmcnt(0)")
    g.stamp(0)
    srd(g, R_A, S_K, BLKB, S_T0)
    a(f"s_add_u32 s{S_V}, s{S_V}, s{S_T0}")
    a(f"s_addc_u32 s{S_V+1}, s{S_V+1}, 0")

    def issue(slot, t, depth=None):
        if depth is not None:
            a(f"s_waitcnt vmcnt({depth-1})")
        v = V_RING + slot * 4
        a(f"buffer_load_dwordx4 v[{v}:{v+3}], v{V_KV}, s[{R_A}:{R_A+3}], s{S_OFF} offen offset:{t*128} nt")
        if t == 2:
            a(f"s_add_u32 s{S_OFF}, s{S_OFF}, 49152")
            a(f"s_cmp_eq_u32 s{S_OFF}, {BLKB}")
            a(f"s_cselect_b32 s{S_OFF}, 0, s{S_OFF}")
    NP = npre * 3
    for j in range(dpre):
        issue(j, j % 3)
    g.c("setup while first loads fly")
    masks(g, T[2], T[3])
    if o["stamp"]: srd(g, R_WS, S_WS, WS_SIZE)
    a(f"s_mov_b32 s{S_L2E}, {LOG2E:#x}")
    QA = T[2]
    a(f"v_lshlrev_b32 v{QA}, 4, v{T[1]}")
    g.c("LDS partial address: (2w+half)*768 + (8c + 4(gq&1))*4")
    RA, MLA = V_U, V_U + 1
    a(f"v_lshrrev_b32 v{RA}, 5, v{V_LANE}")
    a(f"s_lshl_b32 s{S_T0}, s{S_WAVE}, 1")
    a(f"v_add_u32 v{RA}, s{S_T0}, v{RA}")
    a(f"v_mul_u32_u24 v{RA}, 768, v{RA}")
    a(f"v_lshl_add_u32 v{RA}, v{T[1]}, 5, v{RA}")
    a(f"v_and_b32 v{T[3]}, 16, v{V_LANE}")
    a(f"v_add_u32 v{RA}, v{RA}, v{T[3]}")
    a(f"s_lshl_b32 s{S_T0}, s{S_WAVE}, 3")
    a(f"v_mov_b32 v{MLA}, s{S_T0}")
    for j in range(dpre, NP):
        issue(j, j % 3, dpre)
        if j == dpre: g.stamp(7)
        if j == dpre + 11: g.stamp(9)
        if j == dpre + 23: g.stamp(10)
    g.stamp(1)
    a("s_barrier")
    for t in range(3):
        a(f"ds_read_b128 v[{V_Q+4*t}:{V_Q+4*t+3}], v{QA} offset:{L_Q + t*128}")
    a("s_waitcnt lgkmcnt(0)")
    g.stamp(2)

    def k_head():
        for k in range(7, 0, -1):
            a(f"v_mov_b32 v{V_S+k}, v{V_S+k-1}")
        a("s_mov_b32 vcc_lo, 0x01010101")
        a("s_mov_b32 vcc_hi, 0x01010101")
    def k_tile(slot, t, par):
        acc = T[par]
        v = V_RING + slot * 4
        if t == 0:
            a(f"v_mov_b32 v{acc}, 0")
        for k in range(4):
            a(f"v_dot2c_f32_bf16 v{acc}, v{v+k}, v{V_Q+t*4+k}")
        if t == 2:
            g.nop(3)
            a(f"v_add_f32_dpp v{acc}, v{acc}, v{acc} {QP1} {DPPF}")
            g.nop(2)
            a(f"v_add_f32_dpp v{acc}, v{acc}, v{acc} {QP2} {DPPF}")
            g.nop(2)
            a(f"v_add_f32_dpp v{acc}, v{acc}, v{acc} {HM} {DPPF}")
            a(f"v_cndmask_b32 v{V_S}, v{V_S}, v{acc}, vcc")
            a("s_lshl_b64 vcc, vcc, 1")
    LK = max(6, ((d + 2) // 3) * 3)
    LV = LK + 3
    g.c("=== backlog ===")
    issued = NP
    pts = [int((k + 0.5) * NP / LK) for k in range(LK)]
    for j in range(NP):
        if j % 24 == 0: k_head()
        if j in pts:
            assert (issued % 24) < j
            issue(issued % 24, issued % 3, d)
            issued += 1
        need = issued - 1 - j
        if need < max(d, dpre):
            a(f"s_waitcnt vmcnt({need})")
        k_tile(j, j % 3, (j // 3) & 1)
    assert issued == NP + LK
    nk_it = (64 - npre) // 8
    g.c("=== K loop ===")
    a(f"s_mov_b32 s{S_IT}, 0")
    g.lab("L_kloop")
    k_head()
    for j in range(24):
        i = j + LK
        if i == 24:
            a(f"s_cmp_eq_u32 s{S_IT}, {nk_it-1}")
            a(f"s_cselect_b32 s{R_A}, s{S_V}, s{R_A}")
            a(f"s_cselect_b32 s{R_A+1}, s{S_V+1}, s{R_A+1}")
        issue(i % 24, i % 3, d)
        k_tile(j, j % 3, (j // 3) & 1)
    a(f"s_add_u32 s{S_IT}, s{S_IT}, 1")
    a(f"s_cmp_lt_u32 s{S_IT}, {nk_it}")
    a("s_cbranch_scc1 L_kloop")
    g.stamp(3)
    g.c("=== transition: scores -> softmax numerators with this wave's true max ===")
    a(f"s_mov_b32 s{S_T0}, {SCALE:#x}")
    issue(LK, 0, d)
    for k in range(8):
        bf16r(g, V_S + k, V_S + k)
        a(f"v_mul_f32 v{V_S+k}, s{S_T0}, v{V_S+k}")
        bf16r(g, V_S + k, V_S + k)
    MX, LS = T[2], T[3]
    assert MX % 2 == 0
    a(f"v_max3_f32 v{MX}, v{V_S}, v{V_S+1}, v{V_S+2}")
    a(f"v_max3_f32 v{MX}, v{V_S+3}, v{V_S+4}, v{MX}")
    a(f"v_max3_f32 v{MX}, v{V_S+5}, v{V_S+6}, v{MX}")
    a(f"v_max_f32 v{MX}, v{V_S+7}, v{MX}")
    g.nop(2)
    dpp_steps(g, "v_max_f32", [MX], [QP1, QP2, HM, RM])
    swap_reduce(g, "v_max_f32", MX, T[4], [16, 32])
    issue(LK + 1, 1, d)
    for k in range(8):
        a(f"v_sub_f32 v{V_S+k}, v{V_S+k}, v{MX}")
        a(f"v_mul_f32 v{V_S+k}, s{S_L2E}, v{V_S+k}")
        a(f"v_exp_f32 v{V_S+k}, v{V_S+k}")
    a(f"v_add_f32 v{LS}, v{V_S}, v{V_S+1}")
    for k in range(2, 8):
        a(f"v_add_f32 v{LS}, v{LS}, v{V_S+k}")
    for k in range(8):
        a(f"v_cvt_pk_bf16_f32 v{V_S+k}, v{V_S+k}, v{V_S+k}")
    dpp_steps(g, "v_add_f32", [LS], [QP1, QP2, HM, RM])
    swap_reduce(g, "v_add_f32", LS, T[4], [16, 32])
    a(f"v_min_u32 v{MX}, -2, v{MX}")
    a(f"v_min_u32 v{LS}, -2, v{LS}")
    issue(LK + 2, 2, d)
    g.exec_(1)
    a(f"ds_write_b64 v{MLA}, v[{MX}:{LS}] offset:{L_ML}")
    g.exec_(-1)
    for k in range(12):
        a(f"v_mov_b32 v{V_Q+k}, 0")
    g.stamp(4)

    def v_prep(r):
        P = V_S + 7
        q = r & 3
        qp = f"quad_perm:[{q},{q},{q},{q}]"
        t = T[0]
        a(f"v_mov_b32_dpp v{t}, v{P} {qp} {DPPF}")
        near, far = ((0, 1), (2, 3)) if r < 4 else ((2, 3), (0, 1))
        for k in near:
            a(f"v_and_b32_dpp v{V_A+k}, v{P}, v{V_M+k} {qp} {DPPF}")
        for k in far:
            a(f"v_and_b32_dpp v{V_A+k}, v{t}, v{V_M+k} {HM} {DPPF}")
    nend = o["nend"]
    LE = max(LV, ((dend + 2) // 3) * 3)
    def v_loop(tag, nit, lag, depth):
        if nit <= 0: return
        a(f"s_mov_b32 s{S_IT}, 0")
        g.lab(f"L_vloop{tag}")
        for j in range(24):
            i = j + lag
            if j % 3 == 0: v_prep(j // 3)
            issue(i % 24, i % 3, depth)
            mfma(g, V_Q + 4 * (j % 3), V_A, V_RING + j * 4)
        for k in range(7, 0, -1):
            a(f"v_mov_b32 v{V_S+k}, v{V_S+k-1}")
        a(f"s_add_u32 s{S_IT}, s{S_IT}, 1")
        a(f"s_cmp_lt_u32 s{S_IT}, {nit}")
        a(f"s_cbranch_scc1 L_vloop{tag}")
    g.c("=== V loops ===")
    v_loop("a", 8 - nend, LV, d)
    for i in range(LV, LE):
        issue(i, i % 3, dend)
    v_loop("b", nend - 1, LE, dend)
    g.c("=== last V iteration ===")
    for j in range(24):
        i = j + LE
        if j % 3 == 0: v_prep(j // 3)
        if i < 24:
            issue(i, i % 3, dend)
        else:
            a(f"s_waitcnt vmcnt({23 - j})")
            if j % 3 == 0: g.nop(1)
        mfma(g, V_Q + 4 * (j % 3), V_A, V_RING + j * 4)
    g.stamp(5)
    g.c("=== hand partial o to the reducer wave ===")
    g.exec_(0x00ff00ff, 0xff00ff00)
    g.nop(3)
    a(f"ds_write_b128 v{RA}, v[{V_Q}:{V_Q+3}] offset:{L_RED}")
    g.nop(1)
    a(f"ds_write_b128 v{RA}, v[{V_Q+4}:{V_Q+7}] offset:{L_RED + 256}")
    g.nop(1)
    a(f"ds_write_b128 v{RA}, v[{V_Q+8}:{V_Q+11}] offset:{L_RED + 512}")
    a("s_waitcnt lgkmcnt(0)")
    a("s_barrier")
    if o["stamp"]:
        g.exec_(-1)
        g.stamp(6)
        a("s_branch L_fin")
    else:
        a("s_endpgm")

def proj(g, is_q):
    a = g.a
    o = g.o
    T = [V_T + k for k in range(9)]
    nt = 3 if is_q else 2
    stride = 12288 if is_q else 3072
    pace = o["pq"] if is_q else o["ps"]
    J, C, XA, XB, WA, PA, GA = T[0], T[1], T[2], T[3], T[4], T[5], T[6]
    a(f"v_lshrrev_b32 v{J}, 3, v{V_LANE}")
    a(f"v_and_b32 v{C}, 7, v{V_LANE}")
    a(f"v_mul_u32_u24 v{XA}, 40, v{V_LANE}")
    a(f"s_lshl_b32 s{S_T0}, s{S_I}, 3")
    a(f"v_add_u32 v{XB}, s{S_T0}, v{J}")
    a(f"v_mul_u32_u24 v{WA}, {10*stride}, v{XB}")
    a(f"v_mul_u32_u24 v{XB}, 20, v{XB}")
    a(f"v_lshl_add_u32 v{WA}, v{C}, 4, v{WA}")
    a(f"v_lshlrev_b32 v{PA}, 5, v{C}")
    a(f"v_and_b32 v{T[7]}, 16, v{V_LANE}")
    a(f"v_add_u32 v{PA}, v{PA}, v{T[7]}")
    a(f"v_lshrrev_b32 v{T[7]}, 5, v{V_LANE}")
    a(f"v_mul_u32_u24 v{T[7]}, {768 if is_q else 512}, v{T[7]}")
    a(f"v_add_u32 v{PA}, v{PA}, v{T[7]}")
    if is_q:
        a(f"s_mul_i32 s{S_T0}, s{S_H}, {8*1536}")
        a(f"s_mul_i32 s{S_T1}, s{S_B}, 768")
        a(f"s_add_u32 s{S_T0}, s{S_T0}, s{S_T1}")
        a(f"v_min_u32 v{GA}, 47, v{V_LANE}")
        a(f"v_lshlrev_b32 v{GA}, 4, v{GA}")
        a(f"v_add_u32 v{GA}, s{S_T0}, v{GA}")
        a(f"s_movk_i32 s{S_K0}, 4608")
        a(f"s_movk_i32 s{S_K0+1}, 9216")
        a(f"s_mul_i32 s{S_K0+2}, s{S_BLK}, 1536")
        a(f"s_mul_i32 s{S_T0}, s{S_H}, 384")
        a(f"s_sub_u32 s{S_T1}, 7864320, s{S_T0}")
        a("s_waitcnt lgkmcnt(0)")
        g.stamp(0)
        srd(g, R_A, S_WQ, f"s{S_T1}", S_T0)
        srd(g, R_WS, S_WS, WS_SIZE)
    else:
        a(f"s_lshl_b32 s{S_T0}, s{S_H}, 7")
        a(f"s_sub_u32 s{S_T1}, 1966080, s{S_T0}")
        srd(g, R_A, S_WG, f"s{S_T1}", S_T0)
        srd(g, R_B, S_WU, f"s{S_T1}", S_T0)
    srd(g, R_X, S_X, 2560)
    XR = f"s[{R_X}:{R_X+3}]"
    g.Q = []
    a(f"buffer_load_dwordx4 v[{V_XS}:{V_XS+3}], v{XA}, {XR}, 0 offen")
    a(f"buffer_load_dwordx4 v[{V_XS+4}:{V_XS+7}], v{XA}, {XR}, 0 offen offset:16")
    a(f"buffer_load_dwordx2 v[{V_XS+8}:{V_XS+9}], v{XA}, {XR}, 0 offen offset:32")
    for b in range(2):
        v = V_XO + 6 * b
        a(f"buffer_load_dwordx4 v[{v}:{v+3}], v{XB}, {XR}, 0 offen offset:{1280*b}")
        a(f"buffer_load_dword v{v+4}, v{XB}, {XR}, 0 offen offset:{1280*b+16}")
    g.Q += ["xs"] * 3 + ["xo"] * 4
    if is_q:
        fl = " sc1 nt" if o["snapnt"] else " sc1"
        gather(g, snap, GA, fl)
        for t in range(3):
            a(f"buffer_load_dwordx4 v[{V_OLD+4*t}:{V_OLD+4*t+3}], v{PA}, {WSR}, s{S_K0+2} offen offset:{256*t}{fl}")
        g.Q += ["snap"] * 11
    for gi in range(10):
        a(f"s_mov_b32 s{S_T0}, {gi*stride}")
        for t in range(nt):
            v = V_TILE + (gi * nt + t) * 4
            g.pace(pace)
            if is_q:
                a(f"buffer_load_dwordx4 v[{v}:{v+3}], v{WA}, s[{R_A}:{R_A+3}], s{S_T0} offen offset:{128*t} nt")
            else:
                R = (R_A, R_B)[t]
                a(f"buffer_load_dwordx4 v[{v}:{v+3}], v{WA}, s[{R}:{R+3}], s{S_T0} offen nt")
            g.Q.append(f"w{gi}")
    if is_q:
        masks(g, V_A, V_A + 1)
        srd(g, R_DBG, S_DBG, 256)
    g.c("layernorm stats: lanes 0-31 batch 0, lanes 32-63 batch 1")
    SM, VR, t2, t3 = V_A, V_A + 1, V_A + 2, V_A + 3
    a(f"s_mov_b32 s{S_T0}, 0x3f803f80")
    a(f"v_mov_b32 v{SM}, 0")
    g.wait_tag("xs")
    if is_q: g.stamp(1)
    for k in range(10):
        a(f"v_dot2c_f32_bf16 v{SM}, s{S_T0}, v{V_XS+k}")
    g.nop(3)
    dpp_steps(g, "v_add_f32", [SM], [QP1, QP2, HM, RM])
    swap_reduce(g, "v_add_f32", SM, t2, [16])
    a(f"v_mul_f32 v{SM}, {f2u(1.0/640):#x}, v{SM}")
    a(f"v_mov_b32 v{VR}, 0")
    for k in range(10):
        a(f"v_lshlrev_b32 v{t2}, 16, v{V_XS+k}")
        a(f"v_and_b32 v{t3}, 0xffff0000, v{V_XS+k}")
        a(f"v_sub_f32 v{t2}, v{t2}, v{SM}")
        a(f"v_sub_f32 v{t3}, v{t3}, v{SM}")
        a(f"v_fmac_f32 v{VR}, v{t2}, v{t2}")
        a(f"v_fmac_f32 v{VR}, v{t3}, v{t3}")
    g.nop(2)
    dpp_steps(g, "v_add_f32", [VR], [QP1, QP2, HM, RM])
    swap_reduce(g, "v_add_f32", VR, t2, [16])
    a(f"v_mul_f32 v{VR}, {f2u(1.0/640):#x}, v{VR}")
    bf16r(g, SM, SM)
    bf16r(g, VR, VR)
    a(f"v_add_f32 v{VR}, 0x37280000, v{VR}")
    bf16r(g, VR, VR)
    a(f"v_sqrt_f32 v{VR}, v{VR}")
    g.nop(1)
    bf16r(g, VR, VR)
    a(f"v_rcp_f32 v{VR}, v{VR}")
    a(f"v_readlane_b32 s{S_MB0}, v{SM}, 0")
    a(f"v_readlane_b32 s{S_MB1}, v{SM}, 32")
    a(f"v_readlane_b32 s{S_RS0}, v{VR}, 0")
    a(f"v_readlane_b32 s{S_RS1}, v{VR}, 32")
    g.wait_tag("xo")
    XN = V_U
    for b in range(2):
        mb, rs = (S_MB0, S_RS0) if b == 0 else (S_MB1, S_RS1)
        for gi in range(10):
            src = V_XO + 6 * b + (gi >> 1)
            X = XN + b * 10 + gi
            if gi & 1: a(f"v_and_b32 v{X}, 0xffff0000, v{src}")
            else: a(f"v_lshlrev_b32 v{X}, 16, v{src}")
            a(f"v_subrev_f32 v{X}, s{mb}, v{X}")
            bf16r(g, X, X)
            a(f"v_mul_f32 v{X}, s{rs}, v{X}")
            a(f"v_cvt_pk_bf16_f32 v{X}, v{X}, v{X}")
    A2 = V_U + 20
    for gi in range(10):
        for k in range(4):
            a(f"v_and_b32 v{V_A+k}, v{XN+gi}, v{V_M+k}")
        for k in range(4):
            a(f"v_and_b32 v{A2+k}, v{XN+10+gi}, v{V_M+k}")
        g.wait_tag(f"w{gi}")
        g.nop(1)
        for t in range(nt):
            B = V_TILE + (gi * nt + t) * 4
            mfma(g, V_D + 4 * t, V_A, B, first=(gi == 0))
            mfma(g, V_D + 12 + 4 * t, A2, B, first=(gi == 0))
    g.nop(8)
    for r in range(4 * nt):
        a(f"v_permlane32_swap_b32 v{V_D+r}, v{V_D+12+r}")
    for r in range(4 * nt):
        a(f"v_add_f32_dpp v{V_D+r}, v{V_D+12+r}, v{V_D+r} row_ror:8 {DPPF}")
    return PA, GA

def gather(g, base, GA, fl):
    for k in range(8):
        so = ["0", f"s{S_K0}", f"s{S_K0+1}"][k // 3]
        v = base(k)
        g.a(f"buffer_load_dwordx4 v[{v}:{v+3}], v{GA}, {WSR}, {so} offen offset:{(k % 3) * 1536}{fl}")

def final_reduce(g, P):
    a = g.a
    g.nop(1)
    a(f"v_permlane32_swap_b32 v{P}, v{P+2}")
    a(f"v_permlane32_swap_b32 v{P+1}, v{P+3}")
    g.nop(1)
    a(f"v_add_f32 v{P}, v{P}, v{P+2}")
    a(f"v_add_f32 v{P+1}, v{P+1}, v{P+3}")
    g.nop(2)
    a(f"v_permlane16_swap_b32 v{P}, v{P+1}")
    g.nop(2)
    a(f"v_add_f32 v{P}, v{P}, v{P+1}")
    g.nop(2)
    dpp_steps(g, "v_add_f32", [P], ["row_ror:4", "row_ror:8"], tail=False)

def service(g):
    a = g.a
    o = g.o
    T = [V_T + k for k in range(9)]
    g.lab("L_service")
    if o["sprio"]: a(f"s_setprio {o['sprio']}")
    if o["hack"] == 2:
        a("s_waitcnt lgkmcnt(0)")
        g.stamp(0)
        srd(g, R_WS, S_WS, WS_SIZE)
        a("s_branch L_fin")
    a(f"s_cmp_eq_u32 s{S_WAVE}, 4")
    a("s_cbranch_scc0 L_x123")
    g.c("================ X0: q ================")
    PA, GA = proj(g, True)
    g.stamp(2)
    g.c("publish q partial: bit 0 of every word = inverse of what the slot held at entry")
    for r in range(12):
        a(f"v_bitop3_b32 v{V_D+r}, v{V_D+r}, v{V_OLD+r}, 1 bitop3:0x72")
    g.exec_(0x00ff00ff, 0x00ff00ff)
    for t in range(3):
        a(f"buffer_store_dwordx4 v[{V_D+4*t}:{V_D+4*t+3}], v{PA}, {WSR}, s{S_K0+2} offen offset:{256*t} sc1")
    g.exec_(-1)
    a(f"s_mov_b32 s{S_IT}, 0")
    if o["qsleep"]: a(f"s_sleep {o['qsleep']}")
    g.stamp(3)
    new_ = lambda k: V_TILE + 4 * k
    g.lab("L_qpoll")
    gather(g, new_, GA, " sc1")
    a(f"v_mov_b32 v{T[7]}, 1")
    for k in range(8):
        a(f"s_waitcnt vmcnt({7-k})")
        for r in range(4):
            a(f"v_bitop3_b32 v{T[7]}, v{T[7]}, v{new_(k)+r}, v{snap(k)+r} bitop3:0x60")
    a(f"v_cmp_ne_u32 vcc, 1, v{T[7]}")
    a("s_cbranch_vccz L_q_ok")
    a(f"s_add_u32 s{S_IT}, s{S_IT}, 1")
    if o["qsleep2"]: a(f"s_sleep {o['qsleep2']}")
    a(f"s_and_b32 s{S_T0}, s{S_IT}, 3")
    a("s_cbranch_scc1 L_qpoll")
    g.c("fallback (a producer may have written before our entry snapshot): report own partial;")
    g.c("once all eight producers have reported, whatever is read afterwards is this launch's data")
    wait_dbg(g, "L_qs", 0, 1, T[7], 8)
    rpt_off(g, S_T0)
    store1(g, 1, f"s{S_T0}", T[7], T[8], WSR)
    a(f"v_and_b32 v{T[2]}, 7, v{V_LANE}")
    a(f"v_lshlrev_b32 v{T[2]}, 7, v{T[2]}")
    a(f"s_lshl_b32 s{S_T0}, s{S_H}, 10")
    a(f"s_add_u32 s{S_T0}, s{S_T0}, {WS_RPT}")
    a(f"buffer_load_dword v{T[7]}, v{T[2]}, {WSR}, s{S_T0} offen sc1")
    a("s_waitcnt vmcnt(0)")
    a(f"v_cmp_eq_u32 vcc, 0, v{T[7]}")
    a("s_cbranch_vccz L_qfb_ok")
    a(f"s_cmp_lt_u32 s{S_IT}, {SPIN_MAX}")
    a("s_cbranch_scc1 L_qpoll")
    g.lab("L_qfb_ok")
    gather(g, new_, GA, " sc1")
    a("s_waitcnt vmcnt(0)")
    g.stamp(10)
    g.lab("L_q_ok")
    g.stamp(4)
    for r in range(32):
        a(f"v_and_b32 v{V_TILE+r}, -2, v{V_TILE+r}")
    for k in range(1, 8):
        for r in range(4):
            a(f"v_add_f32 v{V_TILE+r}, v{V_TILE+r}, v{V_TILE+4*k+r}")
    a(f"v_lshlrev_b32 v{T[2]}, 3, v{V_LANE}")
    a(f"v_cvt_pk_bf16_f32 v{V_TILE}, v{V_TILE}, v{V_TILE+1}")
    a(f"v_cvt_pk_bf16_f32 v{V_TILE+1}, v{V_TILE+2}, v{V_TILE+3}")
    a(f"ds_write_b64 v{T[2]}, v[{V_TILE}:{V_TILE+1}] offset:{L_Q}")
    a("s_waitcnt lgkmcnt(0)")
    g.stamp(5)
    a("s_barrier")
    a(f"s_cmp_lt_u32 s{S_I}, 5")
    a("s_cbranch_scc1 L_oproj")
    a("s_branch L_final")

    g.lab("L_x123")
    a("s_waitcnt lgkmcnt(0)")
    g.stamp(0)
    srd(g, R_WS, S_WS, WS_SIZE)
    srd(g, R_DBG, S_DBG, 256)
    masks(g, V_A, V_A + 1)
    a(f"s_mov_b32 s{S_L2E}, {LOG2E:#x}")
    a(f"s_cmp_eq_u32 s{S_WAVE}, 6")
    a("s_cbranch_scc1 L_x2")
    a(f"s_cmp_eq_u32 s{S_WAVE}, 7")
    a("s_cbranch_scc1 L_x3")
    g.c("================ X1: gate/up partials, report, down projection ================")
    a("s_barrier")
    a(f"s_cmp_lt_u32 s{S_H}, 24")
    a("s_cbranch_scc0 L_x1_rpt")
    PA, _ = proj(g, False)
    a(f"s_lshl_b32 s{S_T0}, s{S_BLK}, 10")
    a(f"s_add_u32 s{S_T0}, s{S_T0}, {WS_GU}")
    g.exec_(0x00ff00ff, 0x00ff00ff)
    for t in range(2):
        a(f"buffer_store_dwordx4 v[{V_D+4*t}:{V_D+4*t+3}], v{PA}, {WSR}, s{S_T0} offen offset:{256*t} sc1")
    g.exec_(-1)
    g.lab("L_x1_rpt")
    wait_dbg(g, "L_x1s", 0, 1, T[7], 16)
    rpt_off(g, S_T0)
    store1(g, 3, f"s{S_T0}", T[7], T[8], WSR)
    g.stamp(3)
    a(f"s_cmp_lt_u32 s{S_I}, 5")
    a("s_cbranch_scc1 L_oproj")
    a(f"s_cmp_lt_u32 s{S_I}, 6")
    a("s_cbranch_scc1 L_fin")
    g.c("down projection of hidden units 24k..24k+23, k = 2h + i - 6")
    N16, S4, VA, VB = T[0], T[1], T[2], T[3]
    a(f"v_and_b32 v{N16}, 15, v{V_LANE}")
    a(f"v_lshrrev_b32 v{S4}, 4, v{V_LANE}")
    a(f"v_mul_u32_u24 v{VA}, 5120, v{S4}")
    a(f"v_lshl_add_u32 v{VA}, v{N16}, 4, v{VA}")
    a(f"v_mul_u32_u24 v{VB}, 2560, v{S4}")
    a(f"v_lshl_add_u32 v{VB}, v{N16}, 4, v{VB}")
    a(f"v_add_u32 v{VB}, 20480, v{VB}")
    a(f"s_lshl_b32 s{S_T2}, s{S_H}, 1")
    a(f"s_add_u32 s{S_T2}, s{S_T2}, s{S_I}")
    a(f"s_sub_u32 s{S_T2}, s{S_T2}, 6")
    a(f"s_mul_i32 s{S_T0}, s{S_T2}, 30720")
    srd(g, R_A, S_WD, 30720, S_T0)
    for t in range(1, 5):
        a(f"s_movk_i32 s{S_K0+t}, {256*t}")
    for gi in range(6):
        for t in range(5):
            v = V_TILE + (gi * 5 + t) * 4
            va, off = (VA, gi * 1280) if gi < 4 else (VB, (gi - 4) * 1280)
            so = "0" if t == 0 else f"s{S_K0+t}"
            g.pace(o["ps"])
            a(f"buffer_load_dwordx4 v[{v}:{v+3}], v{va}, s[{R_A}:{R_A+3}], {so} offen offset:{off} nt")
    g.c("GU addresses: f -> GU + ((f>>6)*8 + k8)*1024 + b*512 + (f&63)*4")
    GA4, GA2 = T[4], T[5]
    a(f"s_mul_i32 s{S_T0}, s{S_T2}, 24")
    a(f"v_and_b32 v{T[6]}, 7, v{N16}")
    a(f"v_lshlrev_b32 v{T[6]}, 10, v{T[6]}")
    a(f"v_lshrrev_b32 v{T[7]}, 3, v{N16}")
    a(f"v_lshl_add_u32 v{T[6]}, v{T[7]}, 9, v{T[6]}")
    a(f"v_add_u32 v{T[6]}, {WS_GU}, v{T[6]}")
    for GA_, sh, add in ((GA4, 2, 0), (GA2, 1, 16)):
        a(f"v_lshlrev_b32 v{T[7]}, {sh}, v{S4}")
        a(f"s_add_u32 s{S_T1}, s{S_T0}, {add}")
        a(f"v_add_u32 v{T[7]}, s{S_T1}, v{T[7]}")
        a(f"v_lshrrev_b32 v{GA_}, 6, v{T[7]}")
        a(f"v_lshl_add_u32 v{GA_}, v{GA_}, 13, v{T[6]}")
        a(f"v_and_b32 v{T[7]}, 63, v{T[7]}")
        a(f"v_lshl_add_u32 v{GA_}, v{T[7]}, 2, v{GA_}")
    wait_dbg(g, "L_x1g", 128, 1, T[7], 64)
    G, U = V_P, V_P + 6
    a(f"buffer_load_dwordx4 v[{G}:{G+3}], v{GA4}, {WSR}, 0 offen sc1")
    a(f"buffer_load_dwordx2 v[{G+4}:{G+5}], v{GA2}, {WSR}, 0 offen sc1")
    a(f"buffer_load_dwordx4 v[{U}:{U+3}], v{GA4}, {WSR}, 0 offen offset:256 sc1")
    a(f"buffer_load_dwordx2 v[{U+4}:{U+5}], v{GA2}, {WSR}, 0 offen offset:256 sc1")
    a("s_waitcnt vmcnt(0)")
    dpp_steps(g, "v_add_f32", [G + k for k in range(12)], [QP1, QP2, HM])
    for k in range(6):
        bf16r(g, G + k, G + k)
        bf16r(g, U + k, U + k)
        a(f"v_mul_f32 v{G+k}, s{S_L2E}, v{G+k}")
        a(f"v_exp_f32 v{G+k}, -v{G+k}")
        g.nop(1)
        a(f"v_add_f32 v{G+k}, 1.0, v{G+k}")
        a(f"v_rcp_f32 v{G+k}, v{G+k}")
        g.nop(1)
        bf16r(g, G + k, G + k)
        a(f"v_mul_f32 v{G+k}, v{G+k}, v{U+k}")
        a(f"v_cvt_pk_bf16_f32 v{G+k}, v{G+k}, v{G+k}")
    for gi in range(6):
        for k in range(4):
            a(f"v_and_b32 v{V_A+k}, v{G+gi}, v{V_M+k}")
        g.nop(2)
        for t in range(5):
            mfma(g, V_D + 4 * t, V_A, V_TILE + (gi * 5 + t) * 4, first=(gi == 0))
    a(f"v_lshlrev_b32 v{T[4]}, 4, v{V_LANE}")
    a(f"s_mul_i32 s{S_T0}, s{S_T2}, 5120")
    a(f"s_add_u32 s{S_T0}, s{S_T0}, {WS_YB}")
    a(f"s_add_u32 s{S_T1}, s{S_T0}, 4096")
    g.nop(8)
    for t in range(4):
        a(f"buffer_store_dwordx4 v[{V_D+4*t}:{V_D+4*t+3}], v{T[4]}, {WSR}, s{S_T0} offen offset:{1024*t} sc1")
    a(f"buffer_store_dwordx4 v[{V_D+16}:{V_D+19}], v{T[4]}, {WSR}, s{S_T1} offen sc1")
    rpt_off(g, S_T0)
    a("s_waitcnt vmcnt(0)")
    store1(g, 7, f"s{S_T0}", T[7], T[8], WSR)
    g.stamp(5)
    a("s_branch L_fin")

    g.c("================ X3: coordinator in one workgroup ================")
    g.lab("L_x3")
    a(f"s_cmp_eq_u32 s{S_BLK}, {COORD}")
    a("s_cbranch_scc1 L_coord")
    a(f"s_cmp_lt_u32 s{S_I}, 5")
    a("s_cbranch_scc0 L_fin")
    a("s_barrier")
    a("s_branch L_oproj")
    g.lab("L_coord")
    RAD = T[0]
    a(f"v_lshlrev_b32 v{RAD}, 7, v{V_LANE}")
    a(f"v_mov_b32 v{T[1]}, 0")
    for k in range(4):
        a(f"s_mov_b32 s{S_K0+k}, {WS_RPT + k*8192}")
        a(f"buffer_store_dword v{T[1]}, v{RAD}, {WSR}, s{S_K0+k} offen sc1")
    a("s_waitcnt vmcnt(0)")
    store1(g, 1, "0", T[7], T[8], DBGR, 0)
    a("s_barrier")
    g.c("required report value per slot: 3, then 7 for slots with (blk&7)>=6")
    a(f"v_mov_b32 v{T[2]}, 3")
    for rnd in range(2):
        if rnd == 1:
            a(f"v_and_b32 v{T[3]}, 7, v{V_LANE}")
            a(f"v_cmp_lt_u32 vcc, 5, v{T[3]}")
            g.nop(2)
            a(f"v_cndmask_b32 v{T[2]}, 3, 7, vcc")
        a(f"s_mov_b32 s{S_SPIN}, 0")
        g.lab(f"L_co{rnd}")
        a("s_sleep 64")
        for k in range(4):
            a(f"buffer_load_dword v{V_P+k}, v{RAD}, {WSR}, s{S_K0+k} offen sc1")
        a("s_waitcnt vmcnt(0)")
        a(f"v_min_u32 v{V_P}, v{V_P}, v{V_P+1}")
        a(f"v_min3_u32 v{V_P}, v{V_P+2}, v{V_P+3}, v{V_P}")
        a(f"v_cmp_lt_u32 vcc, v{V_P}, v{T[2]}")
        a(f"s_cbranch_vccz L_co{rnd}_ok")
        spin_guard(g, f"L_co{rnd}")
        g.lab(f"L_co{rnd}_ok")
        store1(g, rnd + 1, "0", T[7], T[8], DBGR, 128)
        g.stamp(3 + rnd)
    a("s_branch L_fin")

    g.c("================ X2: empties hand-off slots, softmax weights, reduces partial o ================")
    g.lab("L_x2")
    for k in range(4):
        a(f"v_mov_b32 v{V_P+k}, -1")
    CA = T[5]
    a(f"v_mov_b32 v{T[3]}, 0")
    a(f"v_mov_b32 v{T[4]}, 0")
    a(f"v_lshlrev_b32 v{CA}, 4, v{V_LANE}")
    a(f"s_mul_i32 s{S_T0}, s{S_H}, 5120")
    a(f"s_lshl_b32 s{S_T1}, s{S_I}, 10")
    a(f"s_add_u32 s{S_T0}, s{S_T0}, s{S_T1}")
    a(f"s_add_u32 s{S_T0}, s{S_T0}, {WS_Y}")
    a(f"s_cmp_lt_u32 s{S_I}, 5")
    a(f"s_cselect_b32 s{S_T0}, s{S_T0}, {WS_SIZE}")
    a(f"buffer_store_dwordx4 v[{V_P}:{V_P+3}], v{CA}, {WSR}, s{S_T0} offen sc1")
    a(f"s_mul_i32 s{S_K0+6}, s{S_BLK}, 768")
    a(f"s_add_u32 s{S_K0+6}, s{S_K0+6}, {WS_REC}")
    g.exec_(0xffffffff, 0xffff)
    a(f"buffer_store_dwordx4 v[{V_P}:{V_P+3}], v{CA}, {WSR}, s{S_K0+6} offen sc1")
    a(f"s_lshl_b32 s{S_K0+7}, s{S_BLK}, 7")
    a(f"s_add_u32 s{S_K0+7}, s{S_K0+7}, {WS_MLG}")
    g.exec_(3)
    a(f"ds_write_b128 v{CA}, v[{V_P}:{V_P+3}] offset:{L_ML}")
    g.exec_(1)
    a(f"buffer_store_dwordx2 v[{V_P}:{V_P+1}], v{CA}, {WSR}, s{S_K0+7} offen sc1")
    g.exec_(-1)
    a("s_waitcnt vmcnt(0) lgkmcnt(0)")
    a("s_barrier")
    a(f"s_cmp_lt_u32 s{S_I}, 5")
    a("s_cbranch_scc0 L_x2_ml")

    g.c("================ output projection setup: column tile i, rows 48k..48k+47 (k = wave-4) ================")
    g.lab("L_oproj")
    N16, S4, VA = T[0], T[1], T[2]
    a(f"v_and_b32 v{N16}, 15, v{V_LANE}")
    a(f"v_lshrrev_b32 v{S4}, 4, v{V_LANE}")
    a(f"s_sub_u32 s{S_T2}, s{S_WAVE}, 4")
    g.c("row(g,s) = 48k + 16*(g>>2) + 4s + (g&3)")
    a(f"v_mul_u32_u24 v{VA}, 5120, v{S4}")
    a(f"v_lshl_add_u32 v{VA}, v{N16}, 4, v{VA}")
    a(f"s_mul_i32 s{S_T0}, s{S_H}, 245760")
    a(f"s_mul_i32 s{S_T1}, s{S_T2}, 61440")
    a(f"s_add_u32 s{S_T0}, s{S_T0}, s{S_T1}")
    a(f"s_lshl_b32 s{S_T1}, s{S_I}, 8")
    a(f"v_add_u32 v{VA}, s{S_T1}, v{VA}")
    srd(g, R_A, S_WO, 61440, S_T0)
    a(f"s_movk_i32 s{S_K0+1}, 20480")
    a(f"s_mov_b32 s{S_K0+2}, 40960")
    if o["wosleep"]: a(f"s_sleep {o['wosleep']}")
    for gi in range(12):
        v = V_TILE + gi * 4
        so = "0" if gi < 4 else f"s{S_K0 + gi // 4}"
        g.pace(1 if o["ps"] else 0)
        a(f"buffer_load_dwordx4 v[{v}:{v+3}], v{VA}, s[{R_A}:{R_A+3}], {so} offen offset:{(gi & 3) * 1280} nt")
    g.c("record address: REC + (8h + 4b + (n&3))*768 + (48k + 4s)*4 ; b = n>>3")
    RA, YW = T[3], T[4]
    a(f"v_lshrrev_b32 v{RA}, 3, v{N16}")
    a(f"v_and_b32 v{T[6]}, 3, v{N16}")
    a(f"v_lshl_add_u32 v{RA}, v{RA}, 2, v{T[6]}")
    a(f"v_mul_u32_u24 v{RA}, 768, v{RA}")
    a(f"v_lshl_add_u32 v{RA}, v{S4}, 4, v{RA}")
    a(f"s_mul_i32 s{S_T0}, s{S_H}, 6144")
    a(f"s_mul_i32 s{S_T1}, s{S_T2}, 192")
    a(f"s_add_u32 s{S_T0}, s{S_T0}, s{S_T1}")
    a(f"s_add_u32 s{S_T0}, s{S_T0}, {WS_REC}")
    a(f"v_add_u32 v{RA}, s{S_T0}, v{RA}")
    a(f"s_lshl_b32 s{S_T0}, s{S_T2}, 10")
    a(f"v_lshlrev_b32 v{T[5]}, 4, v{V_LANE}")
    a(f"v_add_u32 v{YW}, s{S_T0}, v{T[5]}")
    a(f"s_mul_i32 s{S_K0+3}, s{S_H}, 5120")
    a(f"s_lshl_b32 s{S_T1}, s{S_I}, 10")
    a(f"s_add_u32 s{S_K0+3}, s{S_K0+3}, s{S_T1}")
    a(f"s_add_u32 s{S_K0+3}, s{S_K0+3}, {WS_Y}")
    a(f"s_cmp_eq_u32 s{S_WAVE}, 6")
    a("s_cbranch_scc0 L_bar2")

    g.lab("L_x2_ml")
    ML = V_P
    a(f"v_and_b32 v{T[6]}, 3, v{V_LANE}")
    a(f"v_lshlrev_b32 v{T[7]}, 3, v{T[6]}")
    a(f"s_mov_b32 s{S_SPIN}, 0")
    g.lab("L_lml")
    a("s_sleep 32")
    a(f"ds_read_b64 v[{ML}:{ML+1}], v{T[7]} offset:{L_ML}")
    a("s_waitcnt lgkmcnt(0)")
    a(f"v_max_u32 v{T[8]}, v{ML}, v{ML+1}")
    a(f"v_cmp_eq_u32 vcc, -1, v{T[8]}")
    a("s_cbranch_vccz L_lml_ok")
    spin_guard(g, "L_lml")
    g.lab("L_lml_ok")
    M_, L_ = V_P + 2, V_P + 3
    def combine(m, l, M, L):
        a(f"v_mov_b32 v{M}, v{m}")
        g.nop(2)
        dpp_steps(g, "v_max_f32", [M], [QP1, QP2])
        a(f"v_sub_f32 v{L}, v{m}, v{M}")
        a(f"v_mul_f32 v{L}, s{S_L2E}, v{L}")
        a(f"v_exp_f32 v{L}, v{L}")
        g.nop(1)
        a(f"v_mul_f32 v{L}, v{L}, v{l}")
        g.nop(2)
        dpp_steps(g, "v_add_f32", [L], [QP1, QP2])
    combine(ML, ML + 1, M_, L_)
    a(f"v_min_u32 v{M_}, -2, v{M_}")
    a(f"v_min_u32 v{L_}, -2, v{L_}")
    a(f"v_mov_b32 v{T[8]}, 0")
    g.exec_(1)
    a(f"buffer_store_dwordx2 v[{M_}:{L_}], v{T[8]}, {WSR}, s{S_K0+7} offen sc1")
    g.exec_(-1)
    wait_dbg(g, "L_x2g", 128, 1, T[8], 64)
    a(f"v_lshlrev_b32 v{T[7]}, 7, v{T[6]}")
    a(f"s_and_b32 s{S_T0}, s{S_BLK}, 0xfc")
    a(f"s_lshl_b32 s{S_T0}, s{S_T0}, 7")
    a(f"s_add_u32 s{S_T0}, s{S_T0}, {WS_MLG}")
    MG = V_P + 4
    a(f"s_mov_b32 s{S_SPIN}, 0")
    g.lab("L_gml")
    a("s_sleep 100")
    a(f"buffer_load_dwordx2 v[{MG}:{MG+1}], v{T[7]}, {WSR}, s{S_T0} offen sc1")
    a("s_waitcnt vmcnt(0)")
    a(f"v_max_u32 v{T[8]}, v{MG}, v{MG+1}")
    a(f"v_cmp_eq_u32 vcc, -1, v{T[8]}")
    a("s_cbranch_vccz L_gml_ok")
    spin_guard(g, "L_gml")
    g.lab("L_gml_ok")
    combine(MG, MG + 1, M_, L_)
    a(f"v_sub_f32 v{ML}, v{ML}, v{M_}")
    a(f"v_mul_f32 v{ML}, s{S_L2E}, v{ML}")
    a(f"v_exp_f32 v{ML}, v{ML}")
    a(f"v_rcp_f32 v{L_}, v{L_}")
    g.nop(1)
    a(f"v_mul_f32 v{ML}, v{ML}, v{L_}")
    g.nop(1)
    for w in range(4):
        a(f"v_readlane_b32 s{S_W0+w}, v{ML}, {w}")
    a(f"v_min_u32 v{T[6]}, 47, v{V_LANE}")
    a(f"v_lshlrev_b32 v{T[6]}, 4, v{T[6]}")
    g.stamp(6)
    a("s_barrier")
    if o["hack"] == 1: a("s_branch L_fin")
    Rr = V_D
    for p in range(8):
        v = V_U + 4 * p if p < 6 else V_XS + 4 * (p - 6)
        a(f"ds_read_b128 v[{v}:{v+3}], v{T[6]} offset:{L_RED + p*768}")
    for p in range(8):
        v = V_U + 4 * p if p < 6 else V_XS + 4 * (p - 6)
        a(f"s_waitcnt lgkmcnt({7-p})")
        for r in range(4):
            if p == 0: a(f"v_mul_f32 v{Rr+r}, s{S_W0}, v{v+r}")
            else: a(f"v_fmac_f32 v{Rr+r}, s{S_W0 + p//2}, v{v+r}")
    for r in range(4):
        a(f"v_min_u32 v{Rr+r}, -2, v{Rr+r}")
    g.exec_(0xffffffff, 0xffff)
    a(f"buffer_store_dwordx4 v[{Rr}:{Rr+3}], v{T[6]}, {WSR}, s{S_K0+6} offen sc1")
    g.exec_(-1)
    g.stamp(11)
    a(f"s_cmp_lt_u32 s{S_I}, 5")
    a("s_cbranch_scc1 L_rec0")
    a("s_branch L_fin")

    g.lab("L_bar2")
    a("s_waitcnt vmcnt(0)")
    g.stamp(6)
    a("s_barrier")
    if o["hack"] == 1: a("s_branch L_fin")
    g.lab("L_rec0")
    g.stamp(7)
    a(f"s_mov_b32 s{S_SPIN}, 0")
    O = V_XO
    g.lab("L_rec")
    for k in range(3):
        a(f"buffer_load_dwordx4 v[{O+4*k}:{O+4*k+3}], v{RA}, {WSR}, 0 offen offset:{64*k} sc1")
    a("s_waitcnt vmcnt(0)")
    a(f"v_max_u32 v{T[8]}, v{O}, v{O+1}")
    for k in range(2, 12, 2):
        a(f"v_max3_u32 v{T[8]}, v{O+k}, v{O+k+1}, v{T[8]}")
    a(f"v_cmp_eq_u32 vcc, -1, v{T[8]}")
    a("s_cbranch_vccz L_rec_ok")
    a("s_mov_b64 exec, vcc")
    if o["psleep"]: a(f"s_sleep {o['psleep']}")
    spin_guard(g, "L_rec")
    g.lab("L_rec_ok")
    g.exec_(-1)
    g.stamp(8)
    dpp_steps(g, "v_add_f32", [O + k for k in range(12)], [QP1, QP2])
    for k in range(12):
        a(f"v_cvt_pk_bf16_f32 v{O+k}, v{O+k}, v{O+k}")
    AA = [V_A, V_U + 20, V_U + 16]
    def mk(gi):
        for k in range(4):
            a(f"v_and_b32 v{AA[gi % 3]+k}, v{O+gi}, v{V_M+k}")
    mk(0)
    for gi in range(12):
        if gi < 11: mk(gi + 1)
        else: g.nop(2)
        mfma(g, V_D + 4, AA[gi % 3], V_TILE + gi * 4, first=(gi == 0))
    D = V_D + 4
    a(f"s_cmp_eq_u32 s{S_WAVE}, 4")
    g.nop(6)
    a("s_cbranch_scc1 L_ysum")
    a(f"ds_write_b128 v{YW}, v[{D}:{D+3}] offset:{L_YR}")
    a("s_waitcnt lgkmcnt(0)")
    a("s_barrier")
    a("s_branch L_fin")
    g.lab("L_ysum")
    a("s_barrier")
    for k in range(1, 4):
        a(f"ds_read_b128 v[{V_U+4*k}:{V_U+4*k+3}], v{YW} offset:{L_YR + 1024*k}")
    for k in range(1, 4):
        a(f"s_waitcnt lgkmcnt({3-k})")
        for r in range(4):
            a(f"v_add_f32 v{D+r}, v{D+r}, v{V_U+4*k+r}")
    for r in range(4):
        a(f"v_min_u32 v{D+r}, -2, v{D+r}")
    a(f"buffer_store_dwordx4 v[{D}:{D+3}], v{YW}, {WSR}, s{S_K0+3} offen sc1")
    g.stamp(9)
    a("s_branch L_fin")

    g.c("================ final reducer: X0 of workgroups with i>=5, unit u = 3h + i - 5 < 80 ================")
    g.lab("L_final")
    a(f"s_mul_i32 s{S_T2}, s{S_H}, 3")
    a(f"s_add_u32 s{S_T2}, s{S_T2}, s{S_I}")
    a(f"s_sub_u32 s{S_T2}, s{S_T2}, 5")
    a(f"s_cmp_ge_u32 s{S_T2}, 80")
    a("s_cbranch_scc1 L_fin")
    CA, OA, XV, BV = T[0], T[1], T[2], T[3]
    a(f"v_lshrrev_b32 v{CA}, 2, v{V_LANE}")
    a(f"v_mul_u32_u24 v{CA}, 5120, v{CA}")
    a(f"v_and_b32 v{OA}, 3, v{V_LANE}")
    a(f"v_lshl_add_u32 v{CA}, v{OA}, 4, v{CA}")
    a(f"s_lshl_b32 s{S_T0}, s{S_T2}, 6")
    a(f"v_add_u32 v{CA}, s{S_T0}, v{CA}")
    g.c("element = 640*(gq>>1) + 128*(u>>4) + 32*(u&3) + 4*(gq&1) + 8q + row ; gq = (u>>2)&3")
    a(f"s_bfe_u32 s{S_T0}, s{S_T2}, 0x10003")
    a(f"s_mul_i32 s{S_T0}, s{S_T0}, 640")
    a(f"s_lshr_b32 s{S_T1}, s{S_T2}, 4")
    a(f"s_lshl_b32 s{S_T1}, s{S_T1}, 7")
    a(f"s_add_u32 s{S_T0}, s{S_T0}, s{S_T1}")
    a(f"s_and_b32 s{S_T1}, s{S_T2}, 3")
    a(f"s_lshl_b32 s{S_T1}, s{S_T1}, 5")
    a(f"s_add_u32 s{S_T0}, s{S_T0}, s{S_T1}")
    a(f"s_and_b32 s{S_T1}, s{S_T2}, 4")
    a(f"s_add_u32 s{S_T0}, s{S_T0}, s{S_T1}")
    a(f"v_lshlrev_b32 v{OA}, 3, v{OA}")
    a(f"v_lshrrev_b32 v{T[4]}, 4, v{V_LANE}")
    a(f"v_add3_u32 v{OA}, v{OA}, v{T[4]}, s{S_T0}")
    a(f"v_lshlrev_b32 v{OA}, 1, v{OA}")
    srd(g, R_OUT, S_OUT, 2560)
    a(f"buffer_load_ushort v{XV}, v{OA}, s[{R_X}:{R_X+3}], 0 offen")
    a("s_sleep 127")
    wait_dbg(g, "L_fg", 128, 2, T[4], 100)
    P = V_TILE
    for k in range(4):
        a(f"s_mov_b32 s{S_T0}, {WS_YB + k*81920}")
        a(f"buffer_load_dwordx4 v[{P+4*k}:{P+4*k+3}], v{CA}, {WSR}, s{S_T0} offen sc1")
    a(f"v_lshlrev_b32 v{XV}, 16, v{XV}")
    a("s_waitcnt vmcnt(0)")
    for k in range(1, 4):
        for r in range(4):
            a(f"v_add_f32 v{P+r}, v{P+r}, v{P+4*k+r}")
    final_reduce(g, P)
    bf16r(g, BV, P)
    a(f"s_mov_b32 s{S_K0}, {WS_Y}")
    a(f"s_mov_b32 s{S_K0+1}, {WS_Y + 81920}")
    a(f"s_mov_b32 s{S_SPIN}, 0")
    g.stamp(6)
    a("s_barrier")
    if o["hack"] == 1: a("s_branch L_fin")
    g.stamp(7)
    g.lab("L_y")
    for k in range(2):
        a(f"buffer_load_dwordx4 v[{P+4*k}:{P+4*k+3}], v{CA}, {WSR}, s{S_K0+k} offen sc1")
    a("s_waitcnt vmcnt(0)")
    a(f"v_max_u32 v{T[4]}, v{P}, v{P+1}")
    for k in range(2, 8, 2):
        a(f"v_max3_u32 v{T[4]}, v{P+k}, v{P+k+1}, v{T[4]}")
    a(f"v_cmp_eq_u32 vcc, -1, v{T[4]}")
    a("s_cbranch_vccz L_y_ok")
    a("s_mov_b64 exec, vcc")
    if o["psleep"]: a(f"s_sleep {o['psleep']}")
    spin_guard(g, "L_y")
    g.lab("L_y_ok")
    g.exec_(-1)
    g.stamp(12)
    for r in range(4):
        a(f"v_add_f32 v{P+r}, v{P+r}, v{P+4+r}")
    final_reduce(g, P)
    bf16r(g, P, P)
    a(f"v_add_f32 v{P}, v{XV}, v{P}")
    bf16r(g, P, P)
    a(f"v_add_f32 v{P}, v{P}, v{BV}")
    a(f"v_cvt_pk_bf16_f32 v{P}, v{P}, v{P}")
    g.exec_(0x000f000f, 0x000f000f)
    a(f"buffer_store_short v{P}, v{OA}, s[{R_OUT}:{R_OUT+3}], 0 offen")
    g.exec_(-1)
    g.stamp(13)

def build(**opts):
    g = Gen(**opts)
    a = g.a
    g.L.append(HEADER + f"; @launch grid=(256,1,1) block=(512,1,1) lds={LDS_BYTES}")
    g.L.append('.amdgcn_target "amdgcn-amd-amdhsa--gfx950"')
    g.L.append(".text")
    g.L.append(f".globl {NAME}_kernel")
    g.L.append(".p2align 8")
    g.L.append(f".type {NAME}_kernel,@function")
    g.lab(f"{NAME}_kernel")
    a("s_cmp_ge_u32 s2, 256")
    a("s_cbranch_scc1 L_end")
    a("s_load_dwordx16 s[16:31], s[0:1], 0")
    a("s_load_dwordx8 s[32:39], s[0:1], 64")
    a(f"v_lshrrev_b32 v{V_T}, 6, v0")
    if g.o["stamp"]:
        a(f"v_mov_b32 v{V_STAMP}, 0")
    a(f"v_and_b32 v{V_LANE}, 63, v0")
    a(f"v_readfirstlane_b32 s{S_WAVE}, v{V_T}")
    a(f"s_and_b32 s{S_T0}, s2, 7")
    a(f"s_lshr_b32 s{S_T1}, s2, 3")
    a(f"s_lshl_b32 s{S_BLK}, s{S_T0}, 5")
    a(f"s_add_u32 s{S_BLK}, s{S_BLK}, s{S_T1}")
    a(f"s_lshr_b32 s{S_H}, s{S_BLK}, 3")
    a(f"s_and_b32 s{S_I}, s{S_BLK}, 7")
    a(f"s_lshr_b32 s{S_B}, s{S_I}, 2")
    a(f"s_cmp_ge_u32 s{S_WAVE}, 4")
    a("s_cbranch_scc1 L_service")
    stream(g)
    service(g)
    g.lab("L_fin")
    if g.o["stamp"]:
        a(f"s_lshl_b32 s{S_T0}, s2, 3")
        a(f"s_add_u32 s{S_T0}, s{S_T0}, s{S_WAVE}")
        a(f"s_lshl_b32 s{S_T0}, s{S_T0}, 6")
        a(f"s_add_u32 s{S_T0}, s{S_T0}, {WS_STAMP}")
        a(f"v_lshlrev_b32 v{V_T}, 2, v{V_LANE}")
        a("s_mov_b64 exec, 0xffff")
        a(f"buffer_store_dword v{V_STAMP}, v{V_T}, {WSR}, s{S_T0} offen")
    g.lab("L_end")
    a("s_endpgm")
    g.L.append(f""".section .rodata,"a"
.p2align 6
.amdhsa_kernel {NAME}_kernel
  .amdhsa_next_free_vgpr 256
  .amdhsa_next_free_sgpr 96
  .amdhsa_accum_offset 256
  .amdhsa_group_segment_fixed_size 0
  .amdhsa_kernarg_size 96
  .amdhsa_user_sgpr_count 2
  .amdhsa_user_sgpr_kernarg_segment_ptr 1
  .amdhsa_system_sgpr_workgroup_id_x 1
  .amdhsa_float_denorm_mode_32 3
.end_amdhsa_kernel""")
    return "\n".join(g.L) + "\n"

def parse(kvs):
    opts = {}
    for kv in kvs:
        k, v = kv.split("=", 1)
        if v in ("True", "False"): v = v == "True"
        elif v.lstrip("-").isdigit(): v = int(v)
        opts[k] = v
    return opts

if __name__ == "__main__":
    if ":" in sys.argv[1] or len(sys.argv) > 2 and ":" in sys.argv[2]:
        for arg in sys.argv[1:]:
            n, _, kv = arg.partition(":")
            open(n + ".s", "w").write(build(**parse([x for x in kv.split(",") if x])))
    else:
        open(sys.argv[1], "w").write(build(**parse(sys.argv[2:])))
```
